```python
import torch

def _softmax(x, axis=-1):
    return torch.softmax(x, dim=axis)
def _gelu(x):
    return torch.nn.functional.gelu(x, approximate="tanh")
def _silu(x):
    return torch.nn.functional.silu(x)
def _sigmoid(x):
    return torch.sigmoid(x)
def _layernorm(x, axis=-1, eps=1e-5):
    m = x.mean(dim=axis, keepdim=True)
    v = x.var(dim=axis, keepdim=True, unbiased=False)
    return (x - m) / torch.sqrt(v + eps)
def _scatter_add(tgt, idx, src, axis=0):
    return tgt.clone().index_add_(axis, idx, src)
def _segment_sum(src, seg, n):
    out = torch.zeros((n,) + src.shape[1:], dtype=src.dtype)
    return out.index_add_(0, seg, src)
def _pad(x, pw):
    flat = tuple(v for pair in reversed(pw) for v in pair)
    return torch.nn.functional.pad(x, flat)

kernel_name = 'standalone__gqa_block_cached__near_ridge'

def setup_inputs():

    _w = (lambda a: (lambda t: t.to(torch.bfloat16) if t.is_floating_point() else t)(torch.as_tensor(a)))
    B, Sq, D = 16, 32, 640
    Hq, Hkv, Sk, Dh = 32, 32, 32, 192
    assert Hq % Hkv == 0, (Hq, Hkv)
    return {
        "x": _w((lambda *s: torch.randn(*s, dtype=torch.bfloat16) * 0.8)(B, Sq, D)),
        "k_cache": _w((lambda *s: torch.randn(*s, dtype=torch.bfloat16) * 0.8)(B, Hkv, Sk, Dh)),
        "v_cache": _w((lambda *s: torch.randn(*s, dtype=torch.bfloat16) * 0.05)(B, Hkv, Sk, Dh)),
        "wq": _w((lambda *s: torch.randn(*s, dtype=torch.bfloat16) * 0.8)(D, Hq * Dh) * (D ** -0.5)),
        "wo": _w((lambda *s: torch.randn(*s, dtype=torch.bfloat16) * 0.05)(Hq * Dh, D) * ((Hq * Dh) ** -0.5)),
    }

def reference(x, k_cache, v_cache, wq, wo):
    B, Sq, D = x.shape
    Hq, Dh = 32, 192
    Hkv = k_cache.shape[1]
    rep = Hq // Hkv
    q = (lambda x, *d: x.permute(*d))((x @ wq).reshape(B, Sq, Hq, Dh), 0, 2, 1, 3)
    k = (lambda x, n, axis: torch.repeat_interleave(x, n, dim=axis))(k_cache, rep, axis=1)
    v = (lambda x, n, axis: torch.repeat_interleave(x, n, dim=axis))(v_cache, rep, axis=1)
    scores = torch.einsum("bhqd,bhkd->bhqk", q, k) * (Dh ** -0.5)
    p = _softmax(scores, axis=-1)
    o = torch.einsum("bhqk,bhkd->bhqd", p, v)
    return (lambda x, *d: x.permute(*d))(o, 0, 2, 1, 3).reshape(B, Sq, Hq * Dh) @ wo
```

```python
class Asm:
    def __init__(self):
        self.lines = []
        self._lbl = 0
    def __call__(self, s):
        for ln in s.split('\n'):
            self.lines.append('    ' + ln.strip() if ln.strip() and not ln.strip().endswith(':') else ln.strip())
    def raw(self, s):
        self.lines.append(s)
    def label(self, name):
        self.lines.append(name + ':')
    def newlabel(self, base='L'):
        self._lbl += 1
        return f'{base}_{self._lbl}'
    def comment(self, s):
        self.lines.append('    ; ' + s)
    def text(self):
        return '\n'.join(self.lines) + '\n'

def vr(lo, n=1):
    return f'v{lo}' if n == 1 else f'v[{lo}:{lo+n-1}]'
def ar(lo, n=1):
    return f'a{lo}' if n == 1 else f'a[{lo}:{lo+n-1}]'
def sr(lo, n=1):
    return f's{lo}' if n == 1 else f's[{lo}:{lo+n-1}]'

HEADER = """; Kernarg layout for this problem (64 bytes, ptrs only, base s[0:1]):
"""

def kernel_begin(a, name):
    a.raw('.text')
    a.raw(f'.globl {name}')
    a.raw('.p2align 8')
    a.raw(f'.type {name},@function')
    a.label(name)

def kernel_desc(a, name, vgpr, sgpr=102, accum=None):
    if accum is None:
        accum = (vgpr + 3)//4*4
    a.raw('.section .rodata,"a"')
    a.raw('.p2align 6')
    a.raw(f'.amdhsa_kernel {name}')
    a.raw(f'  .amdhsa_next_free_vgpr {vgpr}')
    a.raw(f'  .amdhsa_next_free_sgpr {sgpr}')
    a.raw(f'  .amdhsa_accum_offset {accum}')
    a.raw('  .amdhsa_group_segment_fixed_size 0')
    a.raw('  .amdhsa_kernarg_size 64')
    a.raw('  .amdhsa_user_sgpr_count 2')
    a.raw('  .amdhsa_user_sgpr_kernarg_segment_ptr 1')
    a.raw('  .amdhsa_system_sgpr_workgroup_id_x 1')
    a.raw('.end_amdhsa_kernel')

X_BYTES = 16*32*640*2
KV_BYTES = 16*32*32*192*2
W_BYTES = 640*6144*2
OUT_BYTES = 16*32*640*2
WS_BYTES = 268435456

def make_srd(a, d, base, nbytes):
    a(f's_mov_b32 s{d}, s{base}')
    a(f's_and_b32 s{d+1}, s{base+1}, 0xffff')
    a(f's_mov_b32 s{d+2}, {nbytes}')
    a(f's_mov_b32 s{d+3}, 0x00020000')
```

```python
import sys, math, struct
from asmlib import *

def f32bits(x): return struct.unpack('<I', struct.pack('<f', x))[0]

def gen(probe=None):
    a = Asm()
    a.raw(HEADER.rstrip('\n'))
    if probe:
        a.raw(f'; @launch kernel=probe_kernel grid=({probe["nwg"]},1,1) block=(256,1,1) lds=65536')
    a.raw('; @launch kernel=p1_kernel grid=(512,1,1) block=(64,1,1) lds=0')
    a.raw('; @launch kernel=p2_kernel grid=(320,1,1) block=(64,1,1) lds=0')
    a.raw('.amdgcn_target "amdgcn-amd-amdhsa--gfx950"')
    kernel_begin(a, 'p1_kernel')
    a('s_cmp_ge_u32 s2, 512')
    a('s_cbranch_scc1 P1_done')
    a('s_load_dwordx4 s[4:7], s[0:1], 0')
    a('s_load_dwordx2 s[8:9], s[0:1], 24')
    a('s_load_dwordx2 s[10:11], s[0:1], 56')
    a('s_waitcnt lgkmcnt(0)')
    make_srd(a, 12, 4, X_BYTES)
    make_srd(a, 16, 6, KV_BYTES)
    make_srd(a, 20, 8, W_BYTES)
    make_srd(a, 24, 10, WS_BYTES)
    a('s_and_b32 s28, s2, 31')
    a('s_lshr_b32 s29, s2, 5')
    a('v_and_b32 v1, 31, v0')
    a('v_lshrrev_b32 v2, 5, v0')
    a('v_mul_u32_u24 v3, 384, v1')
    a('v_lshl_add_u32 v3, v2, 4, v3')
    a('s_mul_i32 s30, s2, 12288')
    KF = 16
    for ks in range(12):
        a(f'buffer_load_dwordx4 {vr(KF+4*ks,4)}, v3, s[16:19], s30 offen offset:{ks*32}')
    a('v_and_b32 v4, 0x13, v1')
    a('v_and_b32 v5, 4, v1')
    a('v_lshl_or_b32 v4, v5, 1, v4')
    a('v_and_b32 v5, 8, v1')
    a('v_lshrrev_b32 v5, 1, v5')
    a('v_or_b32 v4, v4, v5')
    a('s_movk_i32 s31, 12288')
    a('v_mul_lo_u32 v4, v4, s31')
    a('v_lshl_add_u32 v4, v2, 4, v4')
    a('s_mul_i32 s32, s28, 384')
    a('v_mul_u32_u24 v6, 1280, v1')
    a('v_lshl_add_u32 v6, v2, 4, v6')
    a('s_mul_i32 s33, s29, 40960')
    WF = 64; XF = 112; ACC = 120; AB = 136; S = 144
    for i in range(16):
        a(f'v_mov_b32 v{S+i}, 0')
    a('s_mov_b32 s34, 0')
    a.label('P1_loop')
    for ks in range(12):
        a(f'buffer_load_dwordx4 {vr(WF+4*ks,4)}, v4, s[20:23], s32 offen offset:{ks*32}')
    for t in range(2):
        a(f'buffer_load_dwordx4 {vr(XF+4*t,4)}, v6, s[12:15], s33 offen offset:{t*32}')
    a('s_waitcnt vmcnt(0)')
    for ks in range(12):
        c = '0' if ks == 0 else vr(ACC,16)
        a(f'v_mfma_f32_32x32x16_bf16 {vr(ACC,16)}, {vr(WF+4*ks,4)}, {vr(KF+4*ks,4)}, {c}')
    a('s_nop 15')
    for i in range(8):
        a(f'v_cvt_pk_bf16_f32 v{AB+i}, v{ACC+2*i}, v{ACC+2*i+1}')
    a('s_nop 1')
    for t in range(2):
        a(f'v_mfma_f32_32x32x16_bf16 {vr(S,16)}, {vr(AB+4*t,4)}, {vr(XF+4*t,4)}, {vr(S,16)}')
    a('s_nop 15')
    a('s_add_u32 s32, s32, 32*12288')
    a('s_add_u32 s33, s33, 64')
    a('s_add_u32 s34, s34, 1')
    a('s_cmp_lt_u32 s34, 20')
    a('s_cbranch_scc1 P1_loop')
    a(f'v_max_f32 v8, v{S}, v{S+1}')
    for i in range(2,16):
        a(f'v_max_f32 v8, v8, v{S+i}')
    a('v_mov_b32 v9, v8')
    a('s_nop 1')
    a('v_permlane32_swap_b32 v8, v9')
    a('s_nop 1')
    a('v_max_f32 v8, v8, v9')
    c = math.log2(math.e) / math.sqrt(192.0)
    a(f's_mov_b32 s35, {f32bits(c):#x}')
    a('v_mul_f32 v8, s35, v8')
    for i in range(16):
        a(f'v_fma_f32 v{S+i}, v{S+i}, s35, -v8')
    for i in range(16):
        a(f'v_exp_f32 v{S+i}, v{S+i}')
    a('s_nop 0')
    a(f'v_add_f32 v8, v{S}, v{S+1}')
    for i in range(2,16):
        a(f'v_add_f32 v8, v8, v{S+i}')
    a('v_mov_b32 v9, v8')
    a('s_nop 1')
    a('v_permlane32_swap_b32 v8, v9')
    a('s_nop 1')
    a('v_add_f32 v8, v8, v9')
    a('v_rcp_f32 v8, v8')
    a('s_nop 0')
    for i in range(16):
        a(f'v_mul_f32 v{S+i}, v{S+i}, v8')
    for i in range(8):
        a(f'v_cvt_pk_bf16_f32 v{AB+i}, v{S+2*i}, v{S+2*i+1}')
    a('v_lshlrev_b32 v10, 4, v0')
    a('s_lshl_b32 s36, s2, 11')
    a(f'buffer_store_dwordx4 {vr(AB,4)}, v10, s[24:27], s36 offen')
    a(f'buffer_store_dwordx4 {vr(AB+4,4)}, v10, s[24:27], s36 offen offset:1024')
    a('s_waitcnt vmcnt(0)')
    a.label('P1_done')
    a('s_endpgm')

    kernel_begin(a, 'p2_kernel')
    a('s_cmp_ge_u32 s2, 320')
    a('s_cbranch_scc1 P2_done')
    a('s_load_dwordx2 s[4:5], s[0:1], 16')
    a('s_load_dwordx4 s[8:11], s[0:1], 32')
    a('s_load_dwordx2 s[6:7], s[0:1], 56')
    a('s_waitcnt lgkmcnt(0)')
    make_srd(a, 12, 4, KV_BYTES)
    make_srd(a, 16, 8, W_BYTES)
    make_srd(a, 20, 10, OUT_BYTES)
    make_srd(a, 24, 6, WS_BYTES)
    a('s_and_b32 s29, s2, 15')
    a('s_lshr_b32 s28, s2, 4')
    a('v_and_b32 v1, 31, v0')
    a('v_lshrrev_b32 v2, 5, v0')
    a('v_mul_u32_u24 v3, 384, v1')
    a('v_lshl_add_u32 v3, v2, 4, v3')
    a('s_mul_i32 s30, s29, 32*12288')
    a('v_and_b32 v4, 0x13, v1')
    a('v_and_b32 v5, 4, v1')
    a('v_lshl_or_b32 v4, v5, 1, v4')
    a('v_and_b32 v5, 8, v1')
    a('v_lshrrev_b32 v5, 1, v5')
    a('v_or_b32 v4, v4, v5')
    a('v_lshlrev_b32 v4, 1, v4')
    a('v_mul_u32_u24 v5, 8*1280, v2')
    a('v_add_u32 v4, v4, v5')
    a('v_add_u32 v5, 3*1280, v4')
    a('v_add_u32 v7, 6*1280, v4')
    a('s_lshl_b32 s32, s28, 6')
    a('v_lshlrev_b32 v10, 4, v0')
    a('s_lshl_b32 s33, s29, 16')
    VF = 16; WF = 64; PF = 112; ACC = 120; AB = 136; O = 144
    for i in range(16):
        a(f'v_mov_b32 v{O+i}, 0')
    a('s_mov_b32 s34, 0')
    a.label('P2_loop')
    for ks in range(12):
        a(f'buffer_load_dwordx4 {vr(VF+4*ks,4)}, v3, s[12:15], s30 offen offset:{ks*32}')
    for t in range(2):
        a(f'buffer_load_dwordx4 {vr(PF+4*t,4)}, v10, s[24:27], s33 offen offset:{t*1024}')
    for ks in range(12):
        for j in range(8):
            vreg = [4,4,4,5,5,5,7,7][j]; off = [0,1,2,0,1,2,0,1][j]*1280
            a(f'buffer_load_ushort v{160+j}, v{vreg}, s[16:19], s32 offen offset:{off}')
        a('s_add_u32 s32, s32, 16*1280')
        a('s_waitcnt vmcnt(0)')
        for j in range(4):
            a(f'v_lshl_or_b32 v{WF+4*ks+j}, v{160+2*j+1}, 16, v{160+2*j}')
    a('s_nop 1')
    for ks in range(12):
        c = '0' if ks == 0 else vr(ACC,16)
        a(f'v_mfma_f32_32x32x16_bf16 {vr(ACC,16)}, {vr(VF+4*ks,4)}, {vr(WF+4*ks,4)}, {c}')
    a('s_nop 15')
    for i in range(8):
        a(f'v_cvt_pk_bf16_f32 v{AB+i}, v{ACC+2*i}, v{ACC+2*i+1}')
    a('s_nop 1')
    for t in range(2):
        a(f'v_mfma_f32_32x32x16_bf16 {vr(O,16)}, {vr(AB+4*t,4)}, {vr(PF+4*t,4)}, {vr(O,16)}')
    a('s_nop 15')
    a('s_add_u32 s30, s30, 12288')
    a('s_add_u32 s33, s33, 2048')
    a('s_add_u32 s34, s34, 1')
    a('s_cmp_lt_u32 s34, 32')
    a('s_cbranch_scc1 P2_loop')
    for i in range(8):
        a(f'v_cvt_pk_bf16_f32 v{AB+i}, v{O+2*i}, v{O+2*i+1}')
    a('v_mul_u32_u24 v6, 1280, v1')
    a('v_lshl_add_u32 v6, v2, 4, v6')
    a('s_mul_i32 s35, s29, 40960')
    a('s_lshl_b32 s36, s28, 6')
    a('s_add_u32 s35, s35, s36')
    a(f'buffer_store_dwordx4 {vr(AB,4)}, v6, s[20:23], s35 offen')
    a(f'buffer_store_dwordx4 {vr(AB+4,4)}, v6, s[20:23], s35 offen offset:32')
    a('s_waitcnt vmcnt(0)')
    a.label('P2_done')
    a('s_endpgm')

    if probe:
        nwg = probe['nwg']; nt = ' nt' if probe.get('nt') else ''
        per = probe['bytes']
        kernel_begin(a, 'probe_kernel')
        a(f's_cmp_ge_u32 s2, {nwg}')
        a('s_cbranch_scc1 PR_done')
        a('s_load_dwordx4 s[4:7], s[0:1], 8')
        a('s_load_dwordx4 s[8:11], s[0:1], 24')
        a('s_waitcnt lgkmcnt(0)')
        make_srd(a, 12, 4, KV_BYTES)
        make_srd(a, 16, 6, KV_BYTES)
        make_srd(a, 20, 8, W_BYTES)
        make_srd(a, 24, 10, W_BYTES)
        a('v_lshlrev_b32 v1, 4, v0')
        for srd in (12, 16, 20, 24):
            a(f's_mul_i32 s30, s2, {per}')
            a(f's_add_u32 s31, s30, {per}')
            l = a.newlabel('PR_loop')
            a.label(l)
            for i in range(8):
                a(f'buffer_load_dwordx4 {vr(8+4*i,4)}, v1, s[{srd}:{srd+3}], s30 offen{nt}')
                a('s_add_u32 s30, s30, 4096')
                a('s_waitcnt vmcnt(7)')
            a('s_cmp_lt_u32 s30, s31')
            a(f's_cbranch_scc1 {l}')
        a('s_waitcnt vmcnt(0)')
        a.label('PR_done')
        a('s_endpgm')
    kernel_desc(a, 'p1_kernel', 160)
    kernel_desc(a, 'p2_kernel', 168)
    if probe:
        kernel_desc(a, 'probe_kernel', 64)
    return a.text()

if __name__ == '__main__':
    open('base0.s', 'w').write(gen())
    open('base_probe8.s', 'w').write(gen(dict(nwg=8, bytes=786432)))
    open('base_probe8nt.s', 'w').write(gen(dict(nwg=8, bytes=786432, nt=True)))
    open('base_probe192.s', 'w').write(gen(dict(nwg=192, bytes=32768)))
    open('base_probe192nt.s', 'w').write(gen(dict(nwg=192, bytes=32768, nt=True)))
```

```python
import sys, math, struct
from asmlib import *

def f32bits(x): return struct.unpack('<I', struct.pack('<f', x))[0]

def gen(probe=None):
    a = Asm()
    a.raw(HEADER.rstrip('\n'))
    if probe:
        a.raw(f'; @launch kernel=probe_kernel grid=({probe["nwg"]},1,1) block=(256,1,1) lds=65536')
    a.raw('; @launch kernel=p1_kernel grid=(512,1,1) block=(64,1,1) lds=0')
    a.raw('; @launch kernel=p2_kernel grid=(320,1,1) block=(64,1,1) lds=0')
    a.raw('.amdgcn_target "amdgcn-amd-amdhsa--gfx950"')
    kernel_begin(a, 'p1_kernel')
    a('s_cmp_ge_u32 s2, 512')
    a('s_cbranch_scc1 P1_done')
    a('s_load_dwordx4 s[4:7], s[0:1], 0')
    a('s_load_dwordx2 s[8:9], s[0:1], 24')
    a('s_load_dwordx2 s[10:11], s[0:1], 56')
    a('s_waitcnt lgkmcnt(0)')
    make_srd(a, 12, 4, X_BYTES)
    make_srd(a, 16, 6, KV_BYTES)
    make_srd(a, 20, 8, W_BYTES)
    make_srd(a, 24, 10, WS_BYTES)
    a('s_and_b32 s28, s2, 31')
    a('s_lshr_b32 s29, s2, 5')
    a('v_and_b32 v1, 31, v0')
    a('v_lshrrev_b32 v2, 5, v0')
    a('v_mul_u32_u24 v3, 384, v1')
    a('v_lshl_add_u32 v3, v2, 4, v3')
    a('s_mul_i32 s30, s2, 12288')
    KF = 16
    for ks in range(12):
        a(f'buffer_load_dwordx4 {vr(KF+4*ks,4)}, v3, s[16:19], s30 offen offset:{ks*32}')
    a('v_and_b32 v4, 0x13, v1')
    a('v_and_b32 v5, 4, v1')
    a('v_lshl_or_b32 v4, v5, 1, v4')
    a('v_and_b32 v5, 8, v1')
    a('v_lshrrev_b32 v5, 1, v5')
    a('v_or_b32 v4, v4, v5')
    a('s_movk_i32 s31, 12288')
    a('v_mul_lo_u32 v4, v4, s31')
    a('v_lshl_add_u32 v4, v2, 4, v4')
    a('s_mul_i32 s32, s28, 384')
    a('v_mul_u32_u24 v6, 1280, v1')
    a('v_lshl_add_u32 v6, v2, 4, v6')
    a('s_mul_i32 s33, s29, 40960')
    WF = 64; XF = 112; ACC = 120; AB = 136; S = 144
    for i in range(16):
        a(f'v_mov_b32 v{S+i}, 0')
    a('s_mov_b32 s34, 0')
    a.label('P1_loop')
    for ks in range(12):
        a(f'buffer_load_dwordx4 {vr(WF+4*ks,4)}, v4, s[20:23], s32 offen offset:{ks*32}')
    for t in range(2):
        a(f'buffer_load_dwordx4 {vr(XF+4*t,4)}, v6, s[12:15], s33 offen offset:{t*32}')
    a('s_waitcnt vmcnt(0)')
    for ks in range(12):
        c = '0' if ks == 0 else vr(ACC,16)
        a(f'v_mfma_f32_32x32x16_bf16 {vr(ACC,16)}, {vr(WF+4*ks,4)}, {vr(KF+4*ks,4)}, {c}')
    a('s_nop 15')
    for i in range(8):
        a(f'v_cvt_pk_bf16_f32 v{AB+i}, v{ACC+2*i}, v{ACC+2*i+1}')
    a('s_nop 1')
    for t in range(2):
        a(f'v_mfma_f32_32x32x16_bf16 {vr(S,16)}, {vr(AB+4*t,4)}, {vr(XF+4*t,4)}, {vr(S,16)}')
    a('s_nop 15')
    a('s_add_u32 s32, s32, 32*12288')
    a('s_add_u32 s33, s33, 64')
    a('s_add_u32 s34, s34, 1')
    a('s_cmp_lt_u32 s34, 20')
    a('s_cbranch_scc1 P1_loop')
    a(f'v_max_f32 v8, v{S}, v{S+1}')
    for i in range(2,16):
        a(f'v_max_f32 v8, v8, v{S+i}')
    a('v_mov_b32 v9, v8')
    a('s_nop 1')
    a('v_permlane32_swap_b32 v8, v9')
    a('s_nop 1')
    a('v_max_f32 v8, v8, v9')
    c = math.log2(math.e) / math.sqrt(192.0)
    a(f's_mov_b32 s35, {f32bits(c):#x}')
    a('v_mul_f32 v8, s35, v8')
    for i in range(16):
        a(f'v_fma_f32 v{S+i}, v{S+i}, s35, -v8')
    for i in range(16):
        a(f'v_exp_f32 v{S+i}, v{S+i}')
    a('s_nop 0')
    a(f'v_add_f32 v8, v{S}, v{S+1}')
    for i in range(2,16):
        a(f'v_add_f32 v8, v8, v{S+i}')
    a('v_mov_b32 v9, v8')
    a('s_nop 1')
    a('v_permlane32_swap_b32 v8, v9')
    a('s_nop 1')
    a('v_add_f32 v8, v8, v9')
    a('v_rcp_f32 v8, v8')
    a('s_nop 0')
    for i in range(16):
        a(f'v_mul_f32 v{S+i}, v{S+i}, v8')
    for i in range(8):
        a(f'v_cvt_pk_bf16_f32 v{AB+i}, v{S+2*i}, v{S+2*i+1}')
    a('v_lshlrev_b32 v10, 4, v0')
    a('s_lshl_b32 s36, s2, 11')
    a(f'buffer_store_dwordx4 {vr(AB,4)}, v10, s[24:27], s36 offen')
    a(f'buffer_store_dwordx4 {vr(AB+4,4)}, v10, s[24:27], s36 offen offset:1024')
    a('s_waitcnt vmcnt(0)')
    a.label('P1_done')
    a('s_endpgm')

    kernel_begin(a, 'p2_kernel')
    a('s_cmp_ge_u32 s2, 320')
    a('s_cbranch_scc1 P2_done')
    a('s_load_dwordx2 s[4:5], s[0:1], 16')
    a('s_load_dwordx4 s[8:11], s[0:1], 32')
    a('s_load_dwordx2 s[6:7], s[0:1], 56')
    a('s_waitcnt lgkmcnt(0)')
    make_srd(a, 12, 4, KV_BYTES)
    make_srd(a, 16, 8, W_BYTES)
    make_srd(a, 20, 10, OUT_BYTES)
    make_srd(a, 24, 6, WS_BYTES)
    a('s_and_b32 s29, s2, 15')
    a('s_lshr_b32 s28, s2, 4')
    a('v_and_b32 v1, 31, v0')
    a('v_lshrrev_b32 v2, 5, v0')
    a('v_mul_u32_u24 v3, 384, v1')
    a('v_lshl_add_u32 v3, v2, 4, v3')
    a('s_mul_i32 s30, s29, 32*12288')
    a('v_and_b32 v4, 0x13, v1')
    a('v_and_b32 v5, 4, v1')
    a('v_lshl_or_b32 v4, v5, 1, v4')
    a('v_and_b32 v5, 8, v1')
    a('v_lshrrev_b32 v5, 1, v5')
    a('v_or_b32 v4, v4, v5')
    a('v_lshlrev_b32 v4, 1, v4')
    a('v_mul_u32_u24 v5, 8*1280, v2')
    a('v_add_u32 v4, v4, v5')
    a('v_add_u32 v5, 3*1280, v4')
    a('v_add_u32 v7, 6*1280, v4')
    a('s_lshl_b32 s32, s28, 6')
    a('v_lshlrev_b32 v10, 4, v0')
    a('s_lshl_b32 s33, s29, 16')
    VF = 16; WF = 64; PF = 112; ACC = 120; AB = 136; O = 144
    for i in range(16):
        a(f'v_mov_b32 v{O+i}, 0')
    a('s_mov_b32 s34, 0')
    a.label('P2_loop')
    for ks in range(12):
        a(f'buffer_load_dwordx4 {vr(VF+4*ks,4)}, v3, s[12:15], s30 offen offset:{ks*32}')
    for t in range(2):
        a(f'buffer_load_dwordx4 {vr(PF+4*t,4)}, v10, s[24:27], s33 offen offset:{t*1024}')
    for ks in range(12):
        for j in range(8):
            vreg = [4,4,4,5,5,5,7,7][j]; off = [0,1,2,0,1,2,0,1][j]*1280
            a(f'buffer_load_ushort v{160+j}, v{vreg}, s[16:19], s32 offen offset:{off}')
        a('s_add_u32 s32, s32, 16*1280')
        a('s_waitcnt vmcnt(0)')
        for j in range(4):
            a(f'v_lshl_or_b32 v{WF+4*ks+j}, v{160+2*j+1}, 16, v{160+2*j}')
    a('s_nop 1')
    for ks in range(12):
        c = '0' if ks == 0 else vr(ACC,16)
        a(f'v_mfma_f32_32x32x16_bf16 {vr(ACC,16)}, {vr(VF+4*ks,4)}, {vr(WF+4*ks,4)}, {c}')
    a('s_nop 15')
    for i in range(8):
        a(f'v_cvt_pk_bf16_f32 v{AB+i}, v{ACC+2*i}, v{ACC+2*i+1}')
    a('s_nop 1')
    for t in range(2):
        a(f'v_mfma_f32_32x32x16_bf16 {vr(O,16)}, {vr(AB+4*t,4)}, {vr(PF+4*t,4)}, {vr(O,16)}')
    a('s_nop 15')
    a('s_add_u32 s30, s30, 12288')
    a('s_add_u32 s33, s33, 2048')
    a('s_add_u32 s34, s34, 1')
    a('s_cmp_lt_u32 s34, 32')
    a('s_cbranch_scc1 P2_loop')
    for i in range(8):
        a(f'v_cvt_pk_bf16_f32 v{AB+i}, v{O+2*i}, v{O+2*i+1}')
    a('v_mul_u32_u24 v6, 1280, v1')
    a('v_lshl_add_u32 v6, v2, 4, v6')
    a('s_mul_i32 s35, s29, 40960')
    a('s_lshl_b32 s36, s28, 6')
    a('s_add_u32 s35, s35, s36')
    a(f'buffer_store_dwordx4 {vr(AB,4)}, v6, s[20:23], s35 offen')
    a(f'buffer_store_dwordx4 {vr(AB+4,4)}, v6, s[20:23], s35 offen offset:32')
    a('s_waitcnt vmcnt(0)')
    a.label('P2_done')
    a('s_endpgm')

    if probe:
        nwg = probe['nwg']; nt = ' nt' if probe.get('nt') else ''
        per = probe['bytes']
        kernel_begin(a, 'probe_kernel')
        a(f's_cmp_ge_u32 s2, {nwg}')
        a('s_cbranch_scc1 PR_done')
        a('s_load_dwordx4 s[4:7], s[0:1], 8')
        a('s_load_dwordx4 s[8:11], s[0:1], 24')
        a('s_waitcnt lgkmcnt(0)')
        make_srd(a, 12, 4, KV_BYTES)
        make_srd(a, 16, 6, KV_BYTES)
        make_srd(a, 20, 8, W_BYTES)
        make_srd(a, 24, 10, W_BYTES)
        a('v_lshlrev_b32 v1, 4, v0')
        if probe.get('ws') is not None:
            a('s_load_dwordx2 s[4:5], s[0:1], 56')
            a('s_waitcnt lgkmcnt(0)')
            make_srd(a, 12, 4, WS_BYTES)
        for srd in ((12, 16, 20, 24) if probe.get('ws') is None else (12,)):
            a(f's_mul_i32 s30, s2, {per}')
            if probe.get('ws') is not None:
                a(f's_add_u32 s30, s30, {probe["ws"]}')
            a(f's_add_u32 s31, s30, {per}')
            l = a.newlabel('PR_loop')
            a.label(l)
            for i in range(8):
                a(f'buffer_load_dwordx4 {vr(8+4*i,4)}, v1, s[{srd}:{srd+3}], s30 offen{nt}')
                a('s_add_u32 s30, s30, 4096')
                a('s_waitcnt vmcnt(7)')
            a('s_cmp_lt_u32 s30, s31')
            a(f's_cbranch_scc1 {l}')
        a('s_waitcnt vmcnt(0)')
        a.label('PR_done')
        a('s_endpgm')
    kernel_desc(a, 'p1_kernel', 160)
    kernel_desc(a, 'p2_kernel', 168)
    if probe:
        kernel_desc(a, 'probe_kernel', 64)
    return a.text()

if __name__ == '__main__':
    open('base0.s', 'w').write(gen())
    open('base_probe8.s', 'w').write(gen(dict(nwg=8, bytes=786432)))
    open('base_probe8nt.s', 'w').write(gen(dict(nwg=8, bytes=786432, nt=True)))
    open('base_probe192.s', 'w').write(gen(dict(nwg=192, bytes=32768)))
    open('base_probe192nt.s', 'w').write(gen(dict(nwg=192, bytes=32768, nt=True)))
    open('base_ws_def.s', 'w').write(gen(dict(nwg=256, bytes=393216, ws=16<<20)))
    open('base_ws_nt.s', 'w').write(gen(dict(nwg=256, bytes=393216, ws=16<<20, nt=True)))
    open('base_ws2_def.s', 'w').write(gen(dict(nwg=256, bytes=393216, ws=150<<20)))
    open('base_ws2_nt.s', 'w').write(gen(dict(nwg=256, bytes=393216, ws=150<<20, nt=True)))
```

```python
import sys, math, struct
from asmlib import *

def f32bits(x): return struct.unpack('<I', struct.pack('<f', x))[0]
NAME = 'standalone__gqa_block_cached__near_ridge_kernel'
STAMP_OFF = 128 << 20
P_OFF = 0
FLAG_OFF = 1 << 20
PART_OFF = 2 << 20
SLOT = 40960
NSLOT = 4

S_ACT, S_WGT, S_K, S_WS, S_OUT, S_DBG = 20, 24, 28, 32, 36, 40
S_HG, S_HL, S_BQ, S_LAT, S_W, S_B, S_H = 44, 45, 46, 47, 48, 49, 50
S_ORD = 52
S_N = 54
S_SOW, S_SOA, S_SOW2 = 55, 56, 57
S_M0W, S_M0A = 58, 59
S_DSLOT = 60
S_RSLOT = 61
S_T0, S_T1, S_T2, S_T3 = 62, 63, 64, 65
S_BASEW, S_BASEA = 66, 67
S_SPIN = 68
S_STAMP = 70

def gen(stamps=False, orderA=None, spin_limit=400000):
    a = Asm()
    a.raw(HEADER.rstrip('\n'))
    a.raw('; @launch grid=(256,1,1) block=(256,1,1) lds=163840')
    a.raw('.amdgcn_target "amdgcn-amd-amdhsa--gfx950"')
    kernel_begin(a, NAME)
    NST = 8
    def stamp(i):
        if stamps:
            a(f's_memrealtime s[{S_STAMP+2*i}:{S_STAMP+2*i+1}]')
    a('s_cmp_ge_u32 s2, 256')
    a('s_cbranch_scc1 DONE')
    a('s_load_dwordx16 s[4:19], s[0:1], 0')
    if stamps:
        for i in range(NST):
            a(f's_mov_b64 s[{S_STAMP+2*i}:{S_STAMP+2*i+1}], 0')
    stamp(0)
    a(f's_and_b32 s{S_HG}, s2, 7')
    a(f's_bfe_u32 s{S_HL}, s2, 0x20003')
    a(f's_bfe_u32 s{S_BQ}, s2, 0x20005')
    a(f's_add_u32 s{S_LAT}, s{S_HL}, s{S_BQ}')
    a(f's_and_b32 s{S_LAT}, s{S_LAT}, 3')
    a('v_lshrrev_b32 v1, 6, v0')
    a('v_and_b32 v0, 63, v0')
    a(f'v_readfirstlane_b32 s{S_W}, v1')
    a(f's_mov_b32 s{S_SPIN}, {spin_limit}')
    a('v_lshrrev_b32 v2, 5, v0')
    a('v_and_b32 v3, 31, v0')
    a('v_lshrrev_b32 v4, 3, v0')
    a('v_and_b32 v5, 7, v0')
    a('v_bfe_u32 v6, v0, 2, 2')
    a('v_bfe_u32 v7, v0, 4, 1')
    a('v_and_b32 v8, 1, v0')
    a('v_bfe_u32 v9, v0, 1, 1')
    a('v_lshl_or_b32 v8, v8, 1, v9')
    a('v_lshlrev_b32 v8, 3, v8')
    a('v_lshl_or_b32 v8, v7, 5, v8')
    a('v_lshl_add_u32 v9, v2, 3, v6')
    a(f's_lshl_b32 s{S_B}, s{S_BQ}, 2')
    a(f's_add_u32 s{S_B}, s{S_B}, s{S_W}')
    a(f's_lshl_b32 s{S_H}, s{S_HG}, 2')
    a('v_bfe_u32 v10, v3, 1, 3')
    a('v_xor_b32 v10, v10, v2')
    a('v_lshlrev_b32 v10, 4, v10')
    a('v_lshl_or_b32 v10, v3, 7, v10')
    a('s_waitcnt lgkmcnt(0)')
    make_srd(a, S_WS, 18, WS_BYTES)
    make_srd(a, S_OUT, 14, OUT_BYTES)
    make_srd(a, S_DBG, 16, 256)
    make_srd(a, S_K, 6, KV_BYTES)
    a('s_bitcmp1_b32 s2, 7')
    a('s_cbranch_scc1 ROLE_B')

    V_PW = 12
    V_PA = 17
    V_PK = 28
    V_RW0, V_RW1 = 21, 22
    V_RA = 24
    V_CW0, V_CW1 = 32, 33
    V_CA = 34
    V_L16 = 38
    V_TMP = 40
    FR = 48

    def act_patterns(dst, stride, with_batch_rows):
        for p in range(4):
            a(f'v_add_u32 v{V_TMP}, {8*p}, v4')
            a(f'v_bfe_u32 v{V_TMP+1}, v{V_TMP}, 1, 3')
            a(f'v_xor_b32 v{V_TMP+1}, v{V_TMP+1}, v5')
            a(f'v_mul_u32_u24 v{V_TMP}, {stride}, v{V_TMP}')
            a(f'v_lshl_add_u32 v{dst+p}, v{V_TMP+1}, 4, v{V_TMP}')
            if p: a(f'v_subrev_u32 v{dst+p}, {1024*p}, v{dst+p}')

    def set_read_slot(nw):
        a(f'v_add_u32 v{V_CW0}, s{S_RSLOT}, v{V_RW0}')
        if nw == 2: a(f'v_add_u32 v{V_CW1}, s{S_RSLOT}, v{V_RW1}')
        for k in range(4):
            a(f'v_add_u32 v{V_CA+k}, s{S_RSLOT}, v{V_RA+k}')

    def adv_slot(s):
        a(f's_add_u32 s{s}, s{s}, {SLOT}')
        a(f's_cmp_eq_u32 s{s}, {SLOT*NSLOT}')
        a(f's_cselect_b32 s{s}, 0, s{s}')

    def dma(v, srd, soff, off):
        o = f' offset:{off}' if off else ''
        return f'buffer_load_dwordx4 v{v}, s[{srd}:{srd+3}], s{soff} offen{o} lds'

    def spin_check(lbl='BAIL'):
        a(f's_sub_u32 s{S_SPIN}, s{S_SPIN}, 1')
        a(f's_cbranch_scc1 {lbl}')

    make_srd(a, S_ACT, 4, X_BYTES)
    make_srd(a, S_WGT, 10, W_BYTES)
    a(f's_add_u32 s{S_H}, s{S_H}, s{S_HL}')
    a(f'v_lshlrev_b32 v{V_L16}, 4, v0')
    for i in range(4): a(f'v_mov_b32 v{V_TMP+4+i}, -1')
    a(f's_lshl_b32 s{S_T0}, s{S_B}, 5')
    a(f's_add_u32 s{S_T0}, s{S_T0}, s{S_H}')
    a(f's_lshl_b32 s{S_T1}, s{S_T0}, 11')
    a(f'buffer_store_dwordx4 {vr(V_TMP+4,4)}, v{V_L16}, s[{S_WS}:{S_WS+3}], s{S_T1} offen sc1')
    a(f'buffer_store_dwordx4 {vr(V_TMP+4,4)}, v{V_L16}, s[{S_WS}:{S_WS+3}], s{S_T1} offen offset:1024 sc1')
    a(f's_mov_b32 s{S_T2}, 0xAAAB')
    a(f's_mul_i32 s{S_T3}, s{S_W}, {16*12288}')
    for p in range(3):
        a(f'v_add_u32 v{V_TMP}, {64*p}, v0')
        a(f'v_mul_lo_u32 v{V_TMP+1}, v{V_TMP}, s{S_T2}')
        a(f'v_lshrrev_b32 v{V_TMP+1}, 20, v{V_TMP+1}')
        a(f'v_mul_u32_u24 v{V_TMP+2}, 24, v{V_TMP+1}')
        a(f'v_sub_u32 v{V_TMP+2}, v{V_TMP}, v{V_TMP+2}')
        a(f'v_and_b32 v{V_TMP+3}, 2, v{V_TMP+1}')
        a(f'v_lshlrev_b32 v{V_TMP+3}, 1, v{V_TMP+3}')
        a(f'v_xor_b32 v{V_TMP+2}, v{V_TMP+2}, v{V_TMP+3}')
        a(f'v_mul_u32_u24 v{V_TMP+1}, 12288, v{V_TMP+1}')
        a(f'v_lshl_add_u32 v{V_TMP+1}, v{V_TMP+2}, 4, v{V_TMP+1}')
        a(f'v_add_u32 v{V_PW+p}, s{S_T3}, v{V_TMP+1}')
        if p: a(f'v_subrev_u32 v{V_PW+p}, {1024*p}, v{V_PW+p}')
    act_patterns(V_PA, 1280, True)
    if orderA is None:
        orderA = lambda lat: [(lat+s) % 4 for s in range(4)] + [4 + (lat+s) % 4 for s in range(4)] + [8 + (lat+s) % 2 for s in range(2)]
    def pack(o):
        v = 0
        for n, st in enumerate(o): v |= st << (4*n)
        return v
    for lat in range(4):
        v = pack(orderA(lat))
        if lat == 0:
            a(f's_mov_b32 s{S_ORD}, {v & 0xffffffff:#x}')
            a(f's_mov_b32 s{S_ORD+1}, {v >> 32:#x}')
        else:
            a(f's_cmp_eq_u32 s{S_LAT}, {lat}')
            a(f's_cselect_b32 s{S_ORD}, {v & 0xffffffff:#x}, s{S_ORD}')
            a(f's_cselect_b32 s{S_ORD+1}, {v >> 32:#x}, s{S_ORD+1}')
    a(f's_mul_i32 s{S_BASEW}, s{S_H}, 384')
    a(f's_mul_i32 s{S_BASEA}, s{S_B}, {32*1280}')
    a(f's_mul_i32 s{S_M0W}, s{S_W}, 6144')
    a(f's_lshl_b32 s{S_M0A}, s{S_W}, 12')
    a(f's_add_u32 s{S_M0A}, s{S_M0A}, 24576')

    def A_next_stage():
        return [f's_and_b32 s{S_T0}, s{S_ORD}, 15',
                f's_lshr_b64 s[{S_ORD}:{S_ORD+1}], s[{S_ORD}:{S_ORD+1}], 4',
                f's_mul_i32 s{S_SOW}, s{S_T0}, {64*12288}',
                f's_add_u32 s{S_SOW}, s{S_SOW}, s{S_BASEW}',
                f's_add_u32 s{S_SOW2}, s{S_SOW}, {8*12288}',
                f's_lshl_b32 s{S_SOA}, s{S_T0}, 7',
                f's_add_u32 s{S_SOA}, s{S_SOA}, s{S_BASEA}']
    def A_dma_groups():
        g0 = [f's_add_u32 m0, s{S_DSLOT}, s{S_M0W}', 's_nop 0']
        return [
            [f's_add_u32 m0, s{S_DSLOT}, s{S_M0W}', 's_nop 0', dma(V_PW+0, S_WGT, S_SOW, 0)],
            [dma(V_PW+1, S_WGT, S_SOW, 1024)],
            [dma(V_PW+2, S_WGT, S_SOW, 2048)],
            [f's_add_u32 m0, m0, 3072', 's_nop 0', dma(V_PW+0, S_WGT, S_SOW2, 0)],
            [dma(V_PW+1, S_WGT, S_SOW2, 1024)],
            [dma(V_PW+2, S_WGT, S_SOW2, 2048)],
            [f's_add_u32 m0, s{S_DSLOT}, s{S_M0A}', 's_nop 0', dma(V_PA+0, S_ACT, S_SOA, 0)],
            [dma(V_PA+1, S_ACT, S_SOA, 1024)],
            [dma(V_PA+2, S_ACT, S_SOA, 2048)],
            [dma(V_PA+3, S_ACT, S_SOA, 3072)],
        ]
    def K_dma_groups(thirds):
        out = []
        for n, t in enumerate(thirds):
            pre = [f's_add_u32 s{S_SOA}, s{S_BASEA}, {128*t}',
                   f's_lshl_b32 s{S_T0}, s{S_W}, 12',
                   f's_add_u32 s{S_T0}, s{S_T0}, {16384*n}',
                   f's_add_u32 m0, s{S_DSLOT}, s{S_T0}', 's_nop 0']
            out.append(pre + [dma(V_PK+0, S_K, S_SOA, 0)])
            for p in range(1, 4):
                out.append([dma(V_PK+p, S_K, S_SOA, 1024*p)])
        return out

    a(f's_mov_b32 s{S_DSLOT}, 0')
    for n in range(2):
        for i in A_next_stage(): a(i)
        for g in A_dma_groups():
            for i in g: a(i)
        adv_slot(S_DSLOT)
    act_patterns(V_PK, 384, False)
    a(f'v_mul_u32_u24 v{V_TMP}, 384, v9')
    a(f'v_add_u32 v{V_TMP}, v{V_TMP}, v8')
    a(f'v_bfe_u32 v{V_TMP+1}, v6, 1, 1')
    a(f'v_lshlrev_b32 v{V_TMP+1}, 6, v{V_TMP+1}')
    a(f'v_add_u32 v{V_RW0}, v{V_TMP}, v{V_TMP+1}')
    a(f'v_sub_u32 v{V_RW1}, v{V_TMP}, v{V_TMP+1}')
    for k in range(4):
        a(f'v_xor_b32 v{V_TMP}, {32*k}, v10')
        a(f'v_add_u32 v{V_RA+k}, s{S_M0A}, v{V_TMP}')
    ACC = 112
    for i in range(96): a(f'v_mov_b32 v{ACC+i}, 0')
    a(f's_mov_b32 s{S_RSLOT}, 0')
    set_read_slot(2)

    def A_reads(kk, buf):
        fb = FR + 28*buf
        r = [f'ds_read_b128 {vr(fb+24,4)}, v{V_CA+kk}']
        for i in range(6):
            for u in range(2):
                base = V_CW0 if i % 2 == 0 else V_CW1
                r.append(f'ds_read_b64_tr_b16 {vr(fb+4*i+2*u,2)}, v{base} offset:{(16*kk+4*u)*384 + 64*i}')
        return r
    a('s_waitcnt vmcnt(10)')
    a('s_barrier')
    stamp(1)
    def handshake(base_expr_instrs):
        l = a.newlabel('HS')
        a(f's_cmp_lg_u32 s{S_W}, 0')
        a(f's_cbranch_scc1 {l}')
        for i in base_expr_instrs: a(i)
        a(f'v_mov_b32 v{V_TMP}, 1')
        a(f'v_mov_b32 v{V_TMP+1}, 0')
        a('s_mov_b64 exec, 1')
        a(f'buffer_store_byte v{V_TMP}, v{V_TMP+1}, s[{S_DBG}:{S_DBG+3}], s{S_T0} offen sc1')
        a('s_mov_b64 exec, -1')
        a.label(l)
    handshake([f's_lshl_b32 s{S_T0}, s{S_HG}, 2', f's_add_u32 s{S_T0}, s{S_T0}, s{S_BQ}',
               f's_lshl_b32 s{S_T0}, s{S_T0}, 2', f's_add_u32 s{S_T0}, s{S_T0}, s{S_HL}'])
    for i in A_reads(0, 0): a(i)

    def A_body(dmas, pre, last, vm_wait):
        dmas = list(dmas)
        for i in pre: a(i)
        ngaps = 18
        placed = 0
        for kk in range(4):
            buf = kk & 1
            fb = FR + 28*buf
            if kk < 3: nxt = A_reads(kk+1, buf ^ 1)
            elif not last: nxt = A_reads(0, buf ^ 1)
            else: nxt = None
            for i in range(6):
                if nxt is not None:
                    cnt = 10 if i == 0 else 11
                else:
                    cnt = 10 - 2*i
                a(f's_waitcnt lgkmcnt({cnt})')
                a(f'v_mfma_f32_32x32x16_bf16 {vr(ACC+16*i,16)}, {vr(fb+4*i,4)}, {vr(fb+24,4)}, {vr(ACC+16*i,16)}')
                if kk == 3 and i == 0 and not last:
                    adv_slot(S_RSLOT)
                    set_read_slot(2)
                    a(f's_waitcnt vmcnt({vm_wait})')
                    a('s_barrier')
                if nxt is not None:
                    rs = nxt[0:3] if i == 0 else nxt[1+2*i:3+2*i]
                    for r in rs: a(r)
                if kk < 3:
                    gap = kk*6 + i
                    want = (gap+1)*len(dmas)//ngaps
                    while placed < want:
                        for ins in dmas[placed]: a(ins)
                        placed += 1
        if dmas: adv_slot(S_DSLOT)

    a(f's_mov_b32 s{S_N}, 0')
    a.label('A_LOOP')
    A_body(A_dma_groups(), A_next_stage(), False, 10)
    a(f's_add_u32 s{S_N}, s{S_N}, 1')
    a(f's_cmp_lt_u32 s{S_N}, 8')
    a('s_cbranch_scc1 A_LOOP')
    a(f's_lshl_b32 s{S_T0}, s{S_B}, 5')
    a(f's_add_u32 s{S_T0}, s{S_T0}, s{S_H}')
    a(f's_mul_i32 s{S_BASEA}, s{S_T0}, 12288')
    A_body(K_dma_groups([0, 1]), [], False, 8)
    A_body(K_dma_groups([2]), [], True, 0)
    stamp(2)
    KF = 208
    a('s_waitcnt vmcnt(0)')
    a(f's_lshl_b32 s{S_T0}, s{S_W}, 12')
    a(f's_add_u32 s{S_T0}, s{S_T0}, {2*SLOT}')
    for k in range(4):
        a(f'v_xor_b32 v{V_TMP}, {32*k}, v10')
        a(f'v_add_u32 v{V_CA+k}, s{S_T0}, v{V_TMP}')
    for t in range(3):
        off = [0, 16384, SLOT][t]
        for k in range(4):
            a(f'ds_read_b128 {vr(KF+16*t+4*k,4)}, v{V_CA+k} offset:{off}')
    QB = FR
    S = 96
    a('s_nop 7')
    for i in range(6):
        for j in range(8):
            a(f'v_cvt_pk_bf16_f32 v{QB+8*i+j}, v{ACC+16*i+2*j}, v{ACC+16*i+2*j+1}')
        if i == 0: a('s_waitcnt lgkmcnt(0)')
        a('s_nop 1')
        for t in range(2):
            c = '0' if (i == 0 and t == 0) else vr(S,16)
            a(f'v_mfma_f32_32x32x16_bf16 {vr(S,16)}, {vr(KF+8*i+4*t,4)}, {vr(QB+8*i+4*t,4)}, {c}')
    a('s_nop 15')
    T = V_TMP
    a(f'v_max3_f32 v{T}, v{S}, v{S+1}, v{S+2}')
    for i in range(3, 15, 2):
        a(f'v_max3_f32 v{T}, v{T}, v{S+i}, v{S+i+1}')
    a(f'v_max_f32 v{T}, v{T}, v{S+15}')
    a(f'v_mov_b32 v{T+1}, v{T}')
    a('s_nop 1')
    a(f'v_permlane32_swap_b32 v{T}, v{T+1}')
    c = math.log2(math.e) / math.sqrt(192.0)
    a(f's_mov_b32 s{S_T2}, {f32bits(c):#x}')
    a('s_nop 0')
    a(f'v_max_f32 v{T}, v{T}, v{T+1}')
    a(f'v_mul_f32 v{T}, s{S_T2}, v{T}')
    for i in range(16):
        a(f'v_fma_f32 v{S+i}, v{S+i}, s{S_T2}, -v{T}')
    for i in range(16):
        a(f'v_exp_f32 v{S+i}, v{S+i}')
    a('s_nop 0')
    a(f'v_add_f32 v{T}, v{S}, v{S+1}')
    a(f'v_add_f32 v{T+1}, v{S+2}, v{S+3}')
    for i in range(4, 16, 2):
        a(f'v_add_f32 v{T}, v{T}, v{S+i}')
        a(f'v_add_f32 v{T+1}, v{T+1}, v{S+i+1}')
    a(f'v_add_f32 v{T}, v{T}, v{T+1}')
    a(f'v_mov_b32 v{T+1}, v{T}')
    a('s_nop 1')
    a(f'v_permlane32_swap_b32 v{T}, v{T+1}')
    a('s_nop 1')
    a(f'v_add_f32 v{T}, v{T}, v{T+1}')
    a(f'v_rcp_f32 v{T}, v{T}')
    a(f's_mov_b32 s{S_T3}, 0x7fff7fff')
    for i in range(16):
        a(f'v_mul_f32 v{S+i}, v{S+i}, v{T}')
    for i in range(8):
        a(f'v_cvt_pk_bf16_f32 v{QB+i}, v{S+2*i}, v{S+2*i+1}')
    for i in range(8):
        a(f'v_and_b32 v{QB+i}, s{S_T3}, v{QB+i}')
    a(f's_lshl_b32 s{S_T0}, s{S_B}, 5')
    a(f's_add_u32 s{S_T0}, s{S_T0}, s{S_H}')
    a(f's_lshl_b32 s{S_T1}, s{S_T0}, 11')
    a(f'buffer_store_dwordx4 {vr(QB,4)}, v{V_L16}, s[{S_WS}:{S_WS+3}], s{S_T1} offen sc1')
    a(f'buffer_store_dwordx4 {vr(QB+4,4)}, v{V_L16}, s[{S_WS}:{S_WS+3}], s{S_T1} offen offset:1024 sc1')
    stamp(3)
    a(f's_lshl_b32 s{S_B}, s{S_BQ}, 2')
    a(f's_add_u32 s{S_B}, s{S_B}, s{S_HL}')
    a(f'v_and_b32 v{T}, 7, v0')
    a(f'v_lshlrev_b32 v{T}, 2, v{T}')
    a(f's_lshl_b32 s{S_T0}, s{S_BQ}, 5')
    a(f's_add_u32 s{S_T0}, s{S_T0}, 128')
    a(f's_mov_b32 s{S_T1}, 0x01010101')
    a.label('R_HS')
    spin_check()
    a(f'buffer_load_dword v{T+1}, v{T}, s[{S_DBG}:{S_DBG+3}], s{S_T0} offen sc1')
    a('s_waitcnt vmcnt(0)')
    a(f'v_cmp_ne_u32 vcc, s{S_T1}, v{T+1}')
    a('s_cbranch_vccnz R_HS')
    a(f'v_lshlrev_b32 v{T}, 2, v3')
    a(f's_lshl_b32 s{S_T0}, s{S_B}, 7')
    a(f's_add_u32 s{S_T0}, s{S_T0}, {FLAG_OFF}')
    a(f's_lshl_b32 s{S_T1}, s{S_B}, 3')
    a(f's_add_u32 s{S_T1}, s{S_T1}, s{S_HG}')
    a(f's_mul_i32 s{S_T1}, s{S_T1}, {8*5120}')
    a(f's_add_u32 s{S_T1}, s{S_T1}, {PART_OFF}')
    a(f's_lshl_b32 s{S_T2}, s{S_W}, 10')
    a(f'v_add_u32 v{T+2}, s{S_T2}, v{V_L16}')
    a(f's_lshl_b32 s{S_T2}, s{S_W}, 8')
    a(f's_add_u32 s{S_T2}, s{S_T2}, 4096')
    a(f'v_lshlrev_b32 v{T+3}, 2, v0')
    a(f'v_add_u32 v{T+3}, s{S_T2}, v{T+3}')
    a(f'v_and_b32 v{T+4}, 3, v0')
    a(f'v_mul_u32_u24 v{T+4}, 1280, v{T+4}')
    a(f'v_lshrrev_b32 v{T+5}, 2, v0')
    a(f'v_lshl_add_u32 v{T+4}, v{T+5}, 4, v{T+4}')
    a(f's_lshl_b32 s{S_T2}, s{S_W}, 8')
    a(f'v_add_u32 v{T+4}, s{S_T2}, v{T+4}')
    a(f'v_and_b32 v{T+6}, 3, v{T+5}')
    a(f'v_mul_u32_u24 v{T+6}, 1280, v{T+6}')
    a(f'v_lshrrev_b32 v{T+5}, 4, v0')
    a(f'v_lshl_add_u32 v{T+6}, v{T+5}, 4, v{T+6}')
    a(f'v_and_b32 v{T+5}, 3, v0')
    a(f'v_lshl_add_u32 v{T+6}, v{T+5}, 2, v{T+6}')
    a(f's_lshl_b32 s{S_T2}, s{S_W}, 6')
    a(f's_add_u32 s{S_T2}, s{S_T2}, 1024')
    a(f'v_add_u32 v{T+6}, s{S_T2}, v{T+6}')
    a(f's_lshl_b32 s{S_T2}, s{S_B}, 3')
    a(f's_add_u32 s{S_T2}, s{S_T2}, s{S_HG}')
    a(f's_mul_i32 s{S_T2}, s{S_T2}, {4*1280}')
    a.label('R_POLL')
    spin_check()
    a(f'buffer_load_dword v{T+1}, v{T}, s[{S_WS}:{S_WS+3}], s{S_T0} offen sc1')
    a('s_waitcnt vmcnt(0)')
    a(f'v_cmp_ne_u32 vcc, 1, v{T+1}')
    a('s_cbranch_vccnz R_POLL')
    stamp(4)
    LD = 112
    for s in range(8):
        a(f'buffer_load_dwordx4 {vr(LD+6*s,4)}, v{T+2}, s[{S_WS}:{S_WS+3}], s{S_T1} offen sc1')
        a(f'buffer_load_dword v{LD+6*s+4}, v{T+3}, s[{S_WS}:{S_WS+3}], s{S_T1} offen sc1')
        if s < 7: a(f's_add_u32 s{S_T1}, s{S_T1}, 5120')
    SUM = 96
    a(f's_mov_b32 s{S_T3}, 0xffff0000')
    for s in range(8):
        a(f's_waitcnt vmcnt({14-2*s})')
        for j in range(5):
            src = LD+6*s+j
            if s == 0:
                a(f'v_lshlrev_b32 v{SUM+2*j}, 16, v{src}')
                a(f'v_and_b32 v{SUM+2*j+1}, s{S_T3}, v{src}')
            else:
                a(f'v_lshlrev_b32 v{LD+6*s+5}, 16, v{src}')
                a(f'v_and_b32 v{src}, s{S_T3}, v{src}')
                a(f'v_add_f32 v{SUM+2*j}, v{SUM+2*j}, v{LD+6*s+5}')
                a(f'v_add_f32 v{SUM+2*j+1}, v{SUM+2*j+1}, v{src}')
    for j in range(5):
        a(f'v_cvt_pk_bf16_f32 v{LD+j}, v{SUM+2*j}, v{SUM+2*j+1}')
    a(f'buffer_store_dwordx4 {vr(LD,4)}, v{T+4}, s[{S_OUT}:{S_OUT+3}], s{S_T2} offen')
    a(f'buffer_store_dword v{LD+4}, v{T+6}, s[{S_OUT}:{S_OUT+3}], s{S_T2} offen')
    stamp(5)
    a('s_branch FINISH')

    a.label('ROLE_B')
    make_srd(a, S_ACT, 8, KV_BYTES)
    make_srd(a, S_WGT, 12, W_BYTES)
    a(f'v_lshlrev_b32 v{V_L16}, 4, v0')
    a(f's_lshl_b32 s{S_T0}, s{S_B}, 5')
    a(f's_add_u32 s{S_T0}, s{S_T0}, s{S_H}')
    a(f's_add_u32 s{S_T0}, s{S_T0}, s{S_HL}')
    a(f's_lshl_b32 s{S_T0}, s{S_T0}, 2')
    a(f's_add_u32 s{S_T0}, s{S_T0}, {FLAG_OFF}')
    a(f'v_mov_b32 v{V_TMP}, 0')
    a('s_mov_b64 exec, 1')
    a(f'buffer_store_dword v{V_TMP}, v{V_TMP}, s[{S_WS}:{S_WS+3}], s{S_T0} offen sc1')
    a('s_mov_b64 exec, -1')
    a(f's_mov_b32 s{S_T2}, 0xCCCD')
    a(f's_mul_i32 s{S_T3}, s{S_W}, {16*1280}')
    for p in range(5):
        a(f'v_add_u32 v{V_TMP+4}, {64*p}, v0')
        a(f'v_mul_lo_u32 v{V_TMP+1}, v{V_TMP+4}, s{S_T2}')
        a(f'v_lshrrev_b32 v{V_TMP+1}, 20, v{V_TMP+1}')
        a(f'v_mul_u32_u24 v{V_TMP+2}, 20, v{V_TMP+1}')
        a(f'v_sub_u32 v{V_TMP+2}, v{V_TMP+4}, v{V_TMP+2}')
        a(f'v_mul_u32_u24 v{V_TMP+1}, 1280, v{V_TMP+1}')
        a(f'v_lshl_add_u32 v{V_TMP+1}, v{V_TMP+2}, 4, v{V_TMP+1}')
        a(f'v_add_u32 v{V_PW+p}, s{S_T3}, v{V_TMP+1}')
        if p % 4: a(f'v_subrev_u32 v{V_PW+p}, {1024*(p%4)}, v{V_PW+p}')
    act_patterns(V_PA, 384, False)
    a(f's_mul_i32 s{S_BASEW}, s{S_H}, {192*1280}')
    a(f's_mul_i32 s{S_T0}, s{S_HL}, 320')
    a(f's_add_u32 s{S_BASEW}, s{S_BASEW}, s{S_T0}')
    a(f's_lshl_b32 s{S_T0}, s{S_B}, 5')
    a(f's_add_u32 s{S_T0}, s{S_T0}, s{S_H}')
    a(f's_mul_i32 s{S_BASEA}, s{S_T0}, 12288')
    a(f's_mul_i32 s{S_M0W}, s{S_W}, 5120')
    a(f's_lshl_b32 s{S_M0A}, s{S_W}, 12')
    a(f's_add_u32 s{S_M0A}, s{S_M0A}, 20480')
    a(f's_mov_b32 s{S_ORD}, 0')

    def B_next_stage():
        return [f's_add_u32 s{S_T0}, s{S_ORD}, s{S_LAT}',
                f's_and_b32 s{S_T0}, s{S_T0}, 3',
                f's_lshr_b32 s{S_T1}, s{S_ORD}, 2',
                f's_mul_i32 s{S_SOW}, s{S_T0}, {192*1280}',
                f's_mul_i32 s{S_T2}, s{S_T1}, {64*1280}',
                f's_add_u32 s{S_SOW}, s{S_SOW}, s{S_T2}',
                f's_add_u32 s{S_SOW}, s{S_SOW}, s{S_BASEW}',
                f's_mul_i32 s{S_SOA}, s{S_T0}, 12288',
                f's_lshl_b32 s{S_T1}, s{S_T1}, 7',
                f's_add_u32 s{S_SOA}, s{S_SOA}, s{S_T1}',
                f's_add_u32 s{S_SOA}, s{S_SOA}, s{S_BASEA}',
                f's_cmp_ge_u32 s{S_ORD}, 12',
                f's_cselect_b32 s{S_SOW}, 0, s{S_SOW}',
                f's_cselect_b32 s{S_SOA}, 0, s{S_SOA}',
                f's_cselect_b32 s{S_WGT+2}, 0, s{S_WGT+2}',
                f's_cselect_b32 s{S_ACT+2}, 0, s{S_ACT+2}',
                f's_add_u32 s{S_ORD}, s{S_ORD}, 1']
    def B_dma_groups():
        return [
            [f's_add_u32 m0, s{S_DSLOT}, s{S_M0W}', 's_nop 0', dma(V_PW+0, S_WGT, S_SOW, 0)],
            [dma(V_PW+1, S_WGT, S_SOW, 1024)],
            [dma(V_PW+2, S_WGT, S_SOW, 2048)],
            [dma(V_PW+3, S_WGT, S_SOW, 3072)],
            [f's_add_u32 m0, m0, 4096', 's_nop 0', dma(V_PW+4, S_WGT, S_SOW, 0)],
            [f's_add_u32 m0, s{S_DSLOT}, s{S_M0A}', 's_nop 0', dma(V_PA+0, S_ACT, S_SOA, 0)],
            [dma(V_PA+1, S_ACT, S_SOA, 1024)],
            [dma(V_PA+2, S_ACT, S_SOA, 2048)],
            [dma(V_PA+3, S_ACT, S_SOA, 3072)],
        ]
    a(f's_mov_b32 s{S_DSLOT}, 0')
    for n in range(2):
        for i in B_next_stage(): a(i)
        for g in B_dma_groups():
            for i in g: a(i)
        adv_slot(S_DSLOT)
    a(f'v_mul_u32_u24 v{V_TMP}, 320, v9')
    a(f'v_add_u32 v{V_RW0}, v{V_TMP}, v8')
    for k in range(4):
        a(f'v_xor_b32 v{V_TMP}, {32*k}, v10')
        a(f'v_add_u32 v{V_RA+k}, s{S_M0A}, v{V_TMP}')
    def accB(i, cb):
        return ar(80*i + 16*cb, 16) if i < 2 else vr(96 + 80*(i-2) + 16*cb, 16)
    for i in range(160):
        a(f'v_accvgpr_write_b32 a{i}, 0')
        a(f'v_mov_b32 v{96+i}, 0')
    a(f's_mov_b32 s{S_RSLOT}, 0')
    set_read_slot(1)
    FRB = 48
    def B_reads(kk, buf):
        fb = FRB + 24*buf
        r = [f'ds_read_b128 {vr(fb+20,4)}, v{V_CA+kk}']
        for cb in range(5):
            for u in range(2):
                r.append(f'ds_read_b64_tr_b16 {vr(fb+4*cb+2*u,2)}, v{V_CW0} offset:{(16*kk+4*u)*320 + 64*cb}')
        return r
    a('s_waitcnt vmcnt(9)')
    a('s_barrier')
    stamp(1)
    handshake([f's_lshl_b32 s{S_T0}, s{S_BQ}, 5', f's_add_u32 s{S_T0}, s{S_T0}, s{S_H}',
               f's_add_u32 s{S_T0}, s{S_T0}, s{S_HL}', f's_add_u32 s{S_T0}, s{S_T0}, 128'])
    for i in B_reads(0, 0): a(i)
    a(f's_mov_b32 s{S_N}, 0')
    a.label('B_LOOP')
    for si in range(4):
        dmas = B_dma_groups()
        for i in B_next_stage(): a(i)
        placed = 0; ngaps = 15
        for kk in range(4):
            buf = kk & 1
            fb = FRB + 24*buf
            nxt = B_reads((kk+1) & 3, buf ^ 1)
            for cb in range(5):
                cnt = 8 if cb == 0 else 9
                a(f's_waitcnt lgkmcnt({cnt})')
                a(f'v_mfma_f32_32x32x16_bf16 {accB(si,cb)}, {vr(fb+20,4)}, {vr(fb+4*cb,4)}, {accB(si,cb)}')
                if kk == 3 and cb == 0:
                    adv_slot(S_RSLOT)
                    set_read_slot(1)
                    a('s_waitcnt vmcnt(9)')
                    a('s_barrier')
                rs = nxt[0:3] if cb == 0 else nxt[1+2*cb:3+2*cb]
                for r in rs: a(r)
                if kk < 3:
                    gap = kk*5 + cb
                    want = (gap+1)*len(dmas)//ngaps
                    while placed < want:
                        for ins in dmas[placed]: a(ins)
                        placed += 1
        adv_slot(S_DSLOT)
    a(f's_add_u32 s{S_N}, s{S_N}, 1')
    a(f's_cmp_lt_u32 s{S_N}, 3')
    a('s_cbranch_scc1 B_LOOP')
    stamp(2)
    a('s_waitcnt vmcnt(0) lgkmcnt(0)')
    a('s_nop 7')
    def vwb(i): return {2: 96, 3: 136, 0: 176, 1: 216}[i]
    for i in (2, 3):
        src = 96 + 80*(i-2)
        for j in range(40):
            a(f'v_cvt_pk_bf16_f32 v{vwb(i)+j}, v{src+2*j}, v{src+2*j+1}')
    for i in (0, 1):
        for j in range(0, 40, 2):
            for e in range(4):
                a(f'v_accvgpr_read_b32 v{V_TMP+e}, a{80*i+2*j+e}')
            a(f'v_cvt_pk_bf16_f32 v{vwb(i)+j}, v{V_TMP}, v{V_TMP+1}')
            a(f'v_cvt_pk_bf16_f32 v{vwb(i)+j+1}, v{V_TMP+2}, v{V_TMP+3}')
    T = V_TMP
    a(f's_add_u32 s{S_T0}, s{S_H}, s{S_BQ}')
    a(f's_lshl_b32 s{S_T0}, s{S_T0}, 2')
    a(f's_mov_b32 s{S_T1}, 0x01010101')
    a(f'v_mov_b32 v{T}, 0')
    a.label('B_HS')
    spin_check()
    a(f'buffer_load_dword v{T+1}, v{T}, s[{S_DBG}:{S_DBG+3}], s{S_T0} offen sc1')
    a('s_waitcnt vmcnt(0)')
    a(f'v_cmp_ne_u32 vcc, s{S_T1}, v{T+1}')
    a('s_cbranch_vccnz B_HS')
    SP = 86
    for i in range(4):
        a(f's_add_u32 s{S_T0}, s{S_LAT}, {i}')
        a(f's_and_b32 s{S_T0}, s{S_T0}, 3')
        a(f's_add_u32 s{S_T0}, s{S_T0}, s{S_H}')
        a(f's_lshl_b32 s{S_T1}, s{S_B}, 5')
        a(f's_add_u32 s{S_T0}, s{S_T0}, s{S_T1}')
        a(f's_lshl_b32 s{SP+i}, s{S_T0}, 11')
    a(f'v_lshrrev_b32 v{T+2}, 2, v3')
    a(f'v_mul_u32_u24 v{T+2}, {8*5120}, v{T+2}')
    a(f'v_lshl_add_u32 v{T+2}, v2, 6, v{T+2}')
    a(f'v_and_b32 v{T+3}, 3, v3')
    a(f'v_lshl_add_u32 v{T+2}, v{T+3}, 4, v{T+2}')
    a(f's_lshl_b32 s{S_T2}, s{S_B}, 6')
    a(f's_add_u32 s{S_T2}, s{S_T2}, s{S_HG}')
    a(f's_mul_i32 s{S_T2}, s{S_T2}, 5120')
    a(f's_mul_i32 s{S_T3}, s{S_HL}, 1280')
    a(f's_add_u32 s{S_T2}, s{S_T2}, s{S_T3}')
    a(f's_add_u32 s{S_T2}, s{S_T2}, {PART_OFF}')
    stamp(3)
    PF = 48
    a.label('B_POLL')
    spin_check()
    for i in range(4):
        for t in range(2):
            o = ' offset:1024' if t else ''
            a(f'buffer_load_dwordx4 {vr(PF+8*i+4*t,4)}, v{V_L16}, s[{S_WS}:{S_WS+3}], s{SP+i} offen{o} sc1')
    a('s_waitcnt vmcnt(0)')
    a(f'v_or3_b32 v{T}, v{PF}, v{PF+1}, v{PF+2}')
    for j in range(3, 31, 2):
        a(f'v_or3_b32 v{T}, v{T}, v{PF+j}, v{PF+j+1}')
    a(f'v_or_b32 v{T}, v{T}, v{PF+31}')
    a(f'v_cmp_gt_i32 vcc, 0, v{T}')
    a('s_cbranch_vccnz B_POLL')
    stamp(4)
    OA = [80, 12]
    OB = [28, 4]
    def emit_store(cb):
        o = OA[cb & 1]; ob = OB[cb & 1]
        for j in range(8):
            a(f'v_cvt_pk_bf16_f32 v{ob+j}, v{o+2*j}, v{o+2*j+1}')
        for t in range(2):
            a(f'buffer_store_dwordx4 {vr(ob+4*t,4)}, v{T+2}, s[{S_WS}:{S_WS+3}], s{S_T2} offen offset:{(cb*2+t)*128} sc1')
    for cb in range(5):
        o = OA[cb & 1]
        n = 0
        for i in range(4):
            for t in range(2):
                c = '0' if n == 0 else vr(o,16)
                a(f'v_mfma_f32_32x32x16_bf16 {vr(o,16)}, {vr(vwb(i)+8*cb+4*t,4)}, {vr(PF+8*i+4*t,4)}, {c}')
                n += 1
                if n == 3 and cb > 0:
                    a('s_nop 9')
                    emit_store(cb-1)
    a('s_nop 15')
    emit_store(4)
    a('s_waitcnt vmcnt(0)')
    a(f's_lshl_b32 s{S_T0}, s{S_B}, 5')
    a(f's_add_u32 s{S_T0}, s{S_T0}, s{S_H}')
    a(f's_add_u32 s{S_T0}, s{S_T0}, s{S_HL}')
    a(f's_lshl_b32 s{S_T0}, s{S_T0}, 2')
    a(f's_add_u32 s{S_T0}, s{S_T0}, {FLAG_OFF}')
    a(f'v_mov_b32 v{T}, 1')
    a(f'v_mov_b32 v{T+1}, 0')
    a('s_mov_b64 exec, 1')
    a(f'buffer_store_dword v{T}, v{T+1}, s[{S_WS}:{S_WS+3}], s{S_T0} offen sc1')
    a('s_mov_b64 exec, -1')
    stamp(5)

    a.label('FINISH')
    if stamps:
        a('s_waitcnt vmcnt(0)')
        stamp(6)
        a('s_waitcnt lgkmcnt(0)')
        a(f's_cmp_lg_u32 s{S_W}, 0')
        a('s_cbranch_scc1 DONE')
        a('s_mov_b64 exec, 1')
        a(f's_mul_i32 s{S_T0}, s2, {8*NST}')
        a(f's_add_u32 s{S_T0}, s{S_T0}, {STAMP_OFF}')
        a('v_mov_b32 v3, 0')
        for i in range(NST):
            a(f'v_mov_b32 v4, s{S_STAMP+2*i}')
            a(f'v_mov_b32 v5, s{S_STAMP+2*i+1}')
            a(f'buffer_store_dwordx2 v[4:5], v3, s[{S_WS}:{S_WS+3}], s{S_T0} offen offset:{8*i}')
            a('s_nop 1')
        a('s_waitcnt vmcnt(0)')
    a.label('BAIL')
    a.label('DONE')
    a('s_endpgm')
    kernel_desc(a, NAME, 512, 102, 256)
    return a.text()

if __name__ == '__main__':
    d = 'cdna_kernels/'
    open(d + 'v1.s', 'w').write(gen())
    open(d + 'v1_st.s', 'w').write(gen(stamps=True))
```

```python
import sys, math, struct
from asmlib import *

def f32bits(x): return struct.unpack('<I', struct.pack('<f', x))[0]
NAME = 'standalone__gqa_block_cached__near_ridge_kernel'
STAMP_OFF = 128 << 20
P_OFF = 0
FLAG_OFF = 1 << 20
PART_OFF = 2 << 20
SLOT = 40960
NSLOT = 4

S_ACT, S_WGT, S_K, S_WS, S_OUT, S_DBG = 20, 24, 28, 32, 36, 40
S_HG, S_HL, S_BQ, S_LAT, S_W, S_B, S_H = 44, 45, 46, 47, 48, 49, 50
S_ORD = 52
S_N = 54
S_SOW, S_SOA, S_SOW2 = 55, 56, 57
S_M0W, S_M0A = 58, 59
S_DSLOT = 60
S_RSLOT = 61
S_T0, S_T1, S_T2, S_T3 = 62, 63, 64, 65
S_BASEW, S_BASEA = 66, 67
S_SPIN = 68
S_STAMP = 70

def gen(stamps=False, orderA=None, spin_limit=400000, pad_us=0):
    a = Asm()
    a.raw(HEADER.rstrip('\n'))
    a.raw('; @launch grid=(256,1,1) block=(256,1,1) lds=163840')
    a.raw('.amdgcn_target "amdgcn-amd-amdhsa--gfx950"')
    kernel_begin(a, NAME)
    NST = 8
    def stamp(i):
        if stamps:
            a(f's_memrealtime s[{S_STAMP+2*i}:{S_STAMP+2*i+1}]')
    a('s_cmp_ge_u32 s2, 256')
    a('s_cbranch_scc1 DONE')
    a('s_load_dwordx16 s[4:19], s[0:1], 0')
    if stamps:
        for i in range(NST):
            a(f's_mov_b64 s[{S_STAMP+2*i}:{S_STAMP+2*i+1}], 0')
    stamp(0)
    if pad_us: a('s_memrealtime s[90:91]')
    a(f's_and_b32 s{S_HG}, s2, 7')
    a(f's_bfe_u32 s{S_HL}, s2, 0x20003')
    a(f's_bfe_u32 s{S_BQ}, s2, 0x20005')
    a(f's_add_u32 s{S_LAT}, s{S_HL}, s{S_BQ}')
    a(f's_and_b32 s{S_LAT}, s{S_LAT}, 3')
    a('v_lshrrev_b32 v1, 6, v0')
    a('v_and_b32 v0, 63, v0')
    a(f'v_readfirstlane_b32 s{S_W}, v1')
    a(f's_mov_b32 s{S_SPIN}, {spin_limit}')
    a('v_lshrrev_b32 v2, 5, v0')
    a('v_and_b32 v3, 31, v0')
    a('v_lshrrev_b32 v4, 3, v0')
    a('v_and_b32 v5, 7, v0')
    a('v_bfe_u32 v6, v0, 2, 2')
    a('v_bfe_u32 v7, v0, 4, 1')
    a('v_and_b32 v8, 1, v0')
    a('v_bfe_u32 v9, v0, 1, 1')
    a('v_lshl_or_b32 v8, v8, 1, v9')
    a('v_lshlrev_b32 v8, 3, v8')
    a('v_lshl_or_b32 v8, v7, 5, v8')
    a('v_lshl_add_u32 v9, v2, 3, v6')
    a(f's_lshl_b32 s{S_B}, s{S_BQ}, 2')
    a(f's_add_u32 s{S_B}, s{S_B}, s{S_W}')
    a(f's_lshl_b32 s{S_H}, s{S_HG}, 2')
    a('v_bfe_u32 v10, v3, 1, 3')
    a('v_xor_b32 v10, v10, v2')
    a('v_lshlrev_b32 v10, 4, v10')
    a('v_lshl_or_b32 v10, v3, 7, v10')
    a('s_waitcnt lgkmcnt(0)')
    make_srd(a, S_WS, 18, WS_BYTES)
    make_srd(a, S_OUT, 14, OUT_BYTES)
    make_srd(a, S_DBG, 16, 256)
    make_srd(a, S_K, 6, KV_BYTES)
    a('s_bitcmp1_b32 s2, 7')
    a('s_cbranch_scc1 ROLE_B')

    V_PW = 12
    V_PA = 17
    V_PK = 28
    V_RW0, V_RW1 = 21, 22
    V_RA = 24
    V_CW0, V_CW1 = 32, 33
    V_CA = 34
    V_L16 = 38
    V_TMP = 40
    FR = 48

    def act_patterns(dst, stride, with_batch_rows):
        for p in range(4):
            a(f'v_add_u32 v{V_TMP}, {8*p}, v4')
            a(f'v_bfe_u32 v{V_TMP+1}, v{V_TMP}, 1, 3')
            a(f'v_xor_b32 v{V_TMP+1}, v{V_TMP+1}, v5')
            a(f'v_mul_u32_u24 v{V_TMP}, {stride}, v{V_TMP}')
            a(f'v_lshl_add_u32 v{dst+p}, v{V_TMP+1}, 4, v{V_TMP}')
            if p: a(f'v_subrev_u32 v{dst+p}, {1024*p}, v{dst+p}')

    def set_read_slot(nw):
        a(f'v_add_u32 v{V_CW0}, s{S_RSLOT}, v{V_RW0}')
        if nw == 2: a(f'v_add_u32 v{V_CW1}, s{S_RSLOT}, v{V_RW1}')
        for k in range(4):
            a(f'v_add_u32 v{V_CA+k}, s{S_RSLOT}, v{V_RA+k}')

    def adv_slot(s):
        a(f's_add_u32 s{s}, s{s}, {SLOT}')
        a(f's_cmp_eq_u32 s{s}, {SLOT*NSLOT}')
        a(f's_cselect_b32 s{s}, 0, s{s}')

    def dma(v, srd, soff, off):
        o = f' offset:{off}' if off else ''
        return f'buffer_load_dwordx4 v{v}, s[{srd}:{srd+3}], s{soff} offen{o} lds'

    def spin_check(lbl='BAIL'):
        a(f's_sub_u32 s{S_SPIN}, s{S_SPIN}, 1')
        a(f's_cbranch_scc1 {lbl}')

    make_srd(a, S_ACT, 4, X_BYTES)
    make_srd(a, S_WGT, 10, W_BYTES)
    a(f's_add_u32 s{S_H}, s{S_H}, s{S_HL}')
    a(f'v_lshlrev_b32 v{V_L16}, 4, v0')
    for i in range(4): a(f'v_mov_b32 v{V_TMP+4+i}, -1')
    a(f's_lshl_b32 s{S_T0}, s{S_B}, 5')
    a(f's_add_u32 s{S_T0}, s{S_T0}, s{S_H}')
    a(f's_lshl_b32 s{S_T1}, s{S_T0}, 11')
    a(f'buffer_store_dwordx4 {vr(V_TMP+4,4)}, v{V_L16}, s[{S_WS}:{S_WS+3}], s{S_T1} offen sc1')
    a(f'buffer_store_dwordx4 {vr(V_TMP+4,4)}, v{V_L16}, s[{S_WS}:{S_WS+3}], s{S_T1} offen offset:1024 sc1')
    a(f's_mov_b32 s{S_T2}, 0xAAAB')
    a(f's_mul_i32 s{S_T3}, s{S_W}, {16*12288}')
    for p in range(3):
        a(f'v_add_u32 v{V_TMP}, {64*p}, v0')
        a(f'v_mul_lo_u32 v{V_TMP+1}, v{V_TMP}, s{S_T2}')
        a(f'v_lshrrev_b32 v{V_TMP+1}, 20, v{V_TMP+1}')
        a(f'v_mul_u32_u24 v{V_TMP+2}, 24, v{V_TMP+1}')
        a(f'v_sub_u32 v{V_TMP+2}, v{V_TMP}, v{V_TMP+2}')
        a(f'v_and_b32 v{V_TMP+3}, 2, v{V_TMP+1}')
        a(f'v_lshlrev_b32 v{V_TMP+3}, 1, v{V_TMP+3}')
        a(f'v_xor_b32 v{V_TMP+2}, v{V_TMP+2}, v{V_TMP+3}')
        a(f'v_mul_u32_u24 v{V_TMP+1}, 12288, v{V_TMP+1}')
        a(f'v_lshl_add_u32 v{V_TMP+1}, v{V_TMP+2}, 4, v{V_TMP+1}')
        a(f'v_add_u32 v{V_PW+p}, s{S_T3}, v{V_TMP+1}')
        if p: a(f'v_subrev_u32 v{V_PW+p}, {1024*p}, v{V_PW+p}')
    act_patterns(V_PA, 1280, True)
    if orderA is None:
        orderA = lambda lat: [(lat+s) % 4 for s in range(4)] + [4 + (lat+s) % 4 for s in range(4)] + [8 + (lat+s) % 2 for s in range(2)]
    def pack(o):
        v = 0
        for n, st in enumerate(o): v |= st << (4*n)
        return v
    for lat in range(4):
        v = pack(orderA(lat))
        if lat == 0:
            a(f's_mov_b32 s{S_ORD}, {v & 0xffffffff:#x}')
            a(f's_mov_b32 s{S_ORD+1}, {v >> 32:#x}')
        else:
            a(f's_cmp_eq_u32 s{S_LAT}, {lat}')
            a(f's_cselect_b32 s{S_ORD}, {v & 0xffffffff:#x}, s{S_ORD}')
            a(f's_cselect_b32 s{S_ORD+1}, {v >> 32:#x}, s{S_ORD+1}')
    a(f's_mul_i32 s{S_BASEW}, s{S_H}, 384')
    a(f's_mul_i32 s{S_BASEA}, s{S_B}, {32*1280}')
    a(f's_mul_i32 s{S_M0W}, s{S_W}, 6144')
    a(f's_lshl_b32 s{S_M0A}, s{S_W}, 12')
    a(f's_add_u32 s{S_M0A}, s{S_M0A}, 24576')

    def A_next_stage():
        return [f's_and_b32 s{S_T0}, s{S_ORD}, 15',
                f's_lshr_b64 s[{S_ORD}:{S_ORD+1}], s[{S_ORD}:{S_ORD+1}], 4',
                f's_mul_i32 s{S_SOW}, s{S_T0}, {64*12288}',
                f's_add_u32 s{S_SOW}, s{S_SOW}, s{S_BASEW}',
                f's_add_u32 s{S_SOW2}, s{S_SOW}, {8*12288}',
                f's_lshl_b32 s{S_SOA}, s{S_T0}, 7',
                f's_add_u32 s{S_SOA}, s{S_SOA}, s{S_BASEA}']
    def A_dma_groups():
        g0 = [f's_add_u32 m0, s{S_DSLOT}, s{S_M0W}', 's_nop 0']
        return [
            [f's_add_u32 m0, s{S_DSLOT}, s{S_M0W}', 's_nop 0', dma(V_PW+0, S_WGT, S_SOW, 0)],
            [dma(V_PW+1, S_WGT, S_SOW, 1024)],
            [dma(V_PW+2, S_WGT, S_SOW, 2048)],
            [f's_add_u32 m0, m0, 3072', 's_nop 0', dma(V_PW+0, S_WGT, S_SOW2, 0)],
            [dma(V_PW+1, S_WGT, S_SOW2, 1024)],
            [dma(V_PW+2, S_WGT, S_SOW2, 2048)],
            [f's_add_u32 m0, s{S_DSLOT}, s{S_M0A}', 's_nop 0', dma(V_PA+0, S_ACT, S_SOA, 0)],
            [dma(V_PA+1, S_ACT, S_SOA, 1024)],
            [dma(V_PA+2, S_ACT, S_SOA, 2048)],
            [dma(V_PA+3, S_ACT, S_SOA, 3072)],
        ]
    def K_dma_groups(thirds):
        out = []
        for n, t in enumerate(thirds):
            pre = [f's_add_u32 s{S_SOA}, s{S_BASEA}, {128*t}',
                   f's_lshl_b32 s{S_T0}, s{S_W}, 12',
                   f's_add_u32 s{S_T0}, s{S_T0}, {16384*n}',
                   f's_add_u32 m0, s{S_DSLOT}, s{S_T0}', 's_nop 0']
            out.append(pre + [dma(V_PK+0, S_K, S_SOA, 0)])
            for p in range(1, 4):
                out.append([dma(V_PK+p, S_K, S_SOA, 1024*p)])
        return out

    a(f's_mov_b32 s{S_DSLOT}, 0')
    for n in range(2):
        for i in A_next_stage(): a(i)
        for g in A_dma_groups():
            for i in g: a(i)
        adv_slot(S_DSLOT)
    act_patterns(V_PK, 384, False)
    a(f'v_mul_u32_u24 v{V_TMP}, 384, v9')
    a(f'v_add_u32 v{V_TMP}, v{V_TMP}, v8')
    a(f'v_bfe_u32 v{V_TMP+1}, v6, 1, 1')
    a(f'v_lshlrev_b32 v{V_TMP+1}, 6, v{V_TMP+1}')
    a(f'v_add_u32 v{V_RW0}, v{V_TMP}, v{V_TMP+1}')
    a(f'v_sub_u32 v{V_RW1}, v{V_TMP}, v{V_TMP+1}')
    for k in range(4):
        a(f'v_xor_b32 v{V_TMP}, {32*k}, v10')
        a(f'v_add_u32 v{V_RA+k}, s{S_M0A}, v{V_TMP}')
    ACC = 112
    for i in range(96): a(f'v_mov_b32 v{ACC+i}, 0')
    a(f's_mov_b32 s{S_RSLOT}, 0')
    set_read_slot(2)

    def A_reads(kk, buf):
        fb = FR + 28*buf
        r = [f'ds_read_b128 {vr(fb+24,4)}, v{V_CA+kk}']
        for i in range(6):
            for u in range(2):
                base = V_CW0 if i % 2 == 0 else V_CW1
                r.append(f'ds_read_b64_tr_b16 {vr(fb+4*i+2*u,2)}, v{base} offset:{(16*kk+4*u)*384 + 64*i}')
        return r
    a('s_waitcnt vmcnt(10)')
    a('s_barrier')
    stamp(1)
    def handshake(base_expr_instrs):
        l = a.newlabel('HS')
        a(f's_cmp_lg_u32 s{S_W}, 0')
        a(f's_cbranch_scc1 {l}')
        for i in base_expr_instrs: a(i)
        a(f'v_mov_b32 v{V_TMP}, 1')
        a(f'v_mov_b32 v{V_TMP+1}, 0')
        a('s_mov_b64 exec, 1')
        a(f'buffer_store_byte v{V_TMP}, v{V_TMP+1}, s[{S_DBG}:{S_DBG+3}], s{S_T0} offen sc1')
        a('s_mov_b64 exec, -1')
        a.label(l)
    handshake([f's_lshl_b32 s{S_T0}, s{S_HG}, 2', f's_add_u32 s{S_T0}, s{S_T0}, s{S_BQ}',
               f's_lshl_b32 s{S_T0}, s{S_T0}, 2', f's_add_u32 s{S_T0}, s{S_T0}, s{S_HL}'])
    for i in A_reads(0, 0): a(i)

    def A_body(dmas, pre, last, vm_wait):
        dmas = list(dmas)
        for i in pre: a(i)
        ngaps = 18
        placed = 0
        for kk in range(4):
            buf = kk & 1
            fb = FR + 28*buf
            if kk < 3: nxt = A_reads(kk+1, buf ^ 1)
            elif not last: nxt = A_reads(0, buf ^ 1)
            else: nxt = None
            for i in range(6):
                if nxt is not None:
                    cnt = 10 if i == 0 else 11
                else:
                    cnt = 10 - 2*i
                a(f's_waitcnt lgkmcnt({cnt})')
                a(f'v_mfma_f32_32x32x16_bf16 {vr(ACC+16*i,16)}, {vr(fb+4*i,4)}, {vr(fb+24,4)}, {vr(ACC+16*i,16)}')
                if kk == 3 and i == 0 and not last:
                    adv_slot(S_RSLOT)
                    set_read_slot(2)
                    a(f's_waitcnt vmcnt({vm_wait})')
                    a('s_barrier')
                if nxt is not None:
                    rs = nxt[0:3] if i == 0 else nxt[1+2*i:3+2*i]
                    for r in rs: a(r)
                if kk < 3:
                    gap = kk*6 + i
                    want = (gap+1)*len(dmas)//ngaps
                    while placed < want:
                        for ins in dmas[placed]: a(ins)
                        placed += 1
        if dmas: adv_slot(S_DSLOT)

    a(f's_mov_b32 s{S_N}, 0')
    a.label('A_LOOP')
    A_body(A_dma_groups(), A_next_stage(), False, 10)
    a(f's_add_u32 s{S_N}, s{S_N}, 1')
    a(f's_cmp_lt_u32 s{S_N}, 8')
    a('s_cbranch_scc1 A_LOOP')
    a(f's_lshl_b32 s{S_T0}, s{S_B}, 5')
    a(f's_add_u32 s{S_T0}, s{S_T0}, s{S_H}')
    a(f's_mul_i32 s{S_BASEA}, s{S_T0}, 12288')
    A_body(K_dma_groups([0, 1]), [], False, 8)
    A_body(K_dma_groups([2]), [], True, 0)
    stamp(2)
    KF = 208
    a('s_waitcnt vmcnt(0)')
    a(f's_lshl_b32 s{S_T0}, s{S_W}, 12')
    a(f's_add_u32 s{S_T0}, s{S_T0}, {2*SLOT}')
    for k in range(4):
        a(f'v_xor_b32 v{V_TMP}, {32*k}, v10')
        a(f'v_add_u32 v{V_CA+k}, s{S_T0}, v{V_TMP}')
    for t in range(3):
        off = [0, 16384, SLOT][t]
        for k in range(4):
            a(f'ds_read_b128 {vr(KF+16*t+4*k,4)}, v{V_CA+k} offset:{off}')
    QB = FR
    S = 96
    a('s_nop 7')
    for i in range(6):
        for j in range(8):
            a(f'v_cvt_pk_bf16_f32 v{QB+8*i+j}, v{ACC+16*i+2*j}, v{ACC+16*i+2*j+1}')
        if i == 0: a('s_waitcnt lgkmcnt(0)')
        a('s_nop 1')
        for t in range(2):
            c = '0' if (i == 0 and t == 0) else vr(S,16)
            a(f'v_mfma_f32_32x32x16_bf16 {vr(S,16)}, {vr(KF+8*i+4*t,4)}, {vr(QB+8*i+4*t,4)}, {c}')
    a('s_nop 15')
    T = V_TMP
    a(f'v_max3_f32 v{T}, v{S}, v{S+1}, v{S+2}')
    for i in range(3, 15, 2):
        a(f'v_max3_f32 v{T}, v{T}, v{S+i}, v{S+i+1}')
    a(f'v_max_f32 v{T}, v{T}, v{S+15}')
    a(f'v_mov_b32 v{T+1}, v{T}')
    a('s_nop 1')
    a(f'v_permlane32_swap_b32 v{T}, v{T+1}')
    c = math.log2(math.e) / math.sqrt(192.0)
    a(f's_mov_b32 s{S_T2}, {f32bits(c):#x}')
    a('s_nop 0')
    a(f'v_max_f32 v{T}, v{T}, v{T+1}')
    a(f'v_mul_f32 v{T}, s{S_T2}, v{T}')
    for i in range(16):
        a(f'v_fma_f32 v{S+i}, v{S+i}, s{S_T2}, -v{T}')
    for i in range(16):
        a(f'v_exp_f32 v{S+i}, v{S+i}')
    a('s_nop 0')
    a(f'v_add_f32 v{T}, v{S}, v{S+1}')
    a(f'v_add_f32 v{T+1}, v{S+2}, v{S+3}')
    for i in range(4, 16, 2):
        a(f'v_add_f32 v{T}, v{T}, v{S+i}')
        a(f'v_add_f32 v{T+1}, v{T+1}, v{S+i+1}')
    a(f'v_add_f32 v{T}, v{T}, v{T+1}')
    a(f'v_mov_b32 v{T+1}, v{T}')
    a('s_nop 1')
    a(f'v_permlane32_swap_b32 v{T}, v{T+1}')
    a('s_nop 1')
    a(f'v_add_f32 v{T}, v{T}, v{T+1}')
    a(f'v_rcp_f32 v{T}, v{T}')
    a(f's_mov_b32 s{S_T3}, 0x7fff7fff')
    for i in range(16):
        a(f'v_mul_f32 v{S+i}, v{S+i}, v{T}')
    for i in range(8):
        a(f'v_cvt_pk_bf16_f32 v{QB+i}, v{S+2*i}, v{S+2*i+1}')
    for i in range(8):
        a(f'v_and_b32 v{QB+i}, s{S_T3}, v{QB+i}')
    a(f's_lshl_b32 s{S_T0}, s{S_B}, 5')
    a(f's_add_u32 s{S_T0}, s{S_T0}, s{S_H}')
    a(f's_lshl_b32 s{S_T1}, s{S_T0}, 11')
    a(f'buffer_store_dwordx4 {vr(QB,4)}, v{V_L16}, s[{S_WS}:{S_WS+3}], s{S_T1} offen sc1')
    a(f'buffer_store_dwordx4 {vr(QB+4,4)}, v{V_L16}, s[{S_WS}:{S_WS+3}], s{S_T1} offen offset:1024 sc1')
    stamp(3)
    a(f's_lshl_b32 s{S_B}, s{S_BQ}, 2')
    a(f's_add_u32 s{S_B}, s{S_B}, s{S_HL}')
    a(f'v_and_b32 v{T}, 7, v0')
    a(f'v_lshlrev_b32 v{T}, 2, v{T}')
    a(f's_lshl_b32 s{S_T0}, s{S_BQ}, 5')
    a(f's_add_u32 s{S_T0}, s{S_T0}, 128')
    a(f's_mov_b32 s{S_T1}, 0x01010101')
    a.label('R_HS')
    spin_check()
    a(f'buffer_load_dword v{T+1}, v{T}, s[{S_DBG}:{S_DBG+3}], s{S_T0} offen sc1')
    a('s_waitcnt vmcnt(0)')
    a(f'v_cmp_ne_u32 vcc, s{S_T1}, v{T+1}')
    a('s_cbranch_vccnz R_HS')
    a(f'v_lshlrev_b32 v{T}, 2, v3')
    a(f's_lshl_b32 s{S_T0}, s{S_B}, 7')
    a(f's_add_u32 s{S_T0}, s{S_T0}, {FLAG_OFF}')
    a(f's_lshl_b32 s{S_T1}, s{S_B}, 3')
    a(f's_add_u32 s{S_T1}, s{S_T1}, s{S_HG}')
    a(f's_mul_i32 s{S_T1}, s{S_T1}, {8*5120}')
    a(f's_add_u32 s{S_T1}, s{S_T1}, {PART_OFF}')
    a(f's_lshl_b32 s{S_T2}, s{S_W}, 10')
    a(f'v_add_u32 v{T+2}, s{S_T2}, v{V_L16}')
    a(f's_lshl_b32 s{S_T2}, s{S_W}, 8')
    a(f's_add_u32 s{S_T2}, s{S_T2}, 4096')
    a(f'v_lshlrev_b32 v{T+3}, 2, v0')
    a(f'v_add_u32 v{T+3}, s{S_T2}, v{T+3}')
    a(f'v_and_b32 v{T+4}, 3, v0')
    a(f'v_mul_u32_u24 v{T+4}, 1280, v{T+4}')
    a(f'v_lshrrev_b32 v{T+5}, 2, v0')
    a(f'v_lshl_add_u32 v{T+4}, v{T+5}, 4, v{T+4}')
    a(f's_lshl_b32 s{S_T2}, s{S_W}, 8')
    a(f'v_add_u32 v{T+4}, s{S_T2}, v{T+4}')
    a(f'v_and_b32 v{T+6}, 3, v{T+5}')
    a(f'v_mul_u32_u24 v{T+6}, 1280, v{T+6}')
    a(f'v_lshrrev_b32 v{T+5}, 4, v0')
    a(f'v_lshl_add_u32 v{T+6}, v{T+5}, 4, v{T+6}')
    a(f'v_and_b32 v{T+5}, 3, v0')
    a(f'v_lshl_add_u32 v{T+6}, v{T+5}, 2, v{T+6}')
    a(f's_lshl_b32 s{S_T2}, s{S_W}, 6')
    a(f's_add_u32 s{S_T2}, s{S_T2}, 1024')
    a(f'v_add_u32 v{T+6}, s{S_T2}, v{T+6}')
    a(f's_lshl_b32 s{S_T2}, s{S_B}, 3')
    a(f's_add_u32 s{S_T2}, s{S_T2}, s{S_HG}')
    a(f's_mul_i32 s{S_T2}, s{S_T2}, {4*1280}')
    a.label('R_POLL')
    spin_check()
    a(f'buffer_load_dword v{T+1}, v{T}, s[{S_WS}:{S_WS+3}], s{S_T0} offen sc1')
    a('s_waitcnt vmcnt(0)')
    a(f'v_cmp_ne_u32 vcc, 1, v{T+1}')
    a('s_cbranch_vccnz R_POLL')
    stamp(4)
    LD = 112
    for s in range(8):
        a(f'buffer_load_dwordx4 {vr(LD+6*s,4)}, v{T+2}, s[{S_WS}:{S_WS+3}], s{S_T1} offen sc1')
        a(f'buffer_load_dword v{LD+6*s+4}, v{T+3}, s[{S_WS}:{S_WS+3}], s{S_T1} offen sc1')
        if s < 7: a(f's_add_u32 s{S_T1}, s{S_T1}, 5120')
    SUM = 96
    a(f's_mov_b32 s{S_T3}, 0xffff0000')
    for s in range(8):
        a(f's_waitcnt vmcnt({14-2*s})')
        for j in range(5):
            src = LD+6*s+j
            if s == 0:
                a(f'v_lshlrev_b32 v{SUM+2*j}, 16, v{src}')
                a(f'v_and_b32 v{SUM+2*j+1}, s{S_T3}, v{src}')
            else:
                a(f'v_lshlrev_b32 v{LD+6*s+5}, 16, v{src}')
                a(f'v_and_b32 v{src}, s{S_T3}, v{src}')
                a(f'v_add_f32 v{SUM+2*j}, v{SUM+2*j}, v{LD+6*s+5}')
                a(f'v_add_f32 v{SUM+2*j+1}, v{SUM+2*j+1}, v{src}')
    for j in range(5):
        a(f'v_cvt_pk_bf16_f32 v{LD+j}, v{SUM+2*j}, v{SUM+2*j+1}')
    a(f'buffer_store_dwordx4 {vr(LD,4)}, v{T+4}, s[{S_OUT}:{S_OUT+3}], s{S_T2} offen')
    a(f'buffer_store_dword v{LD+4}, v{T+6}, s[{S_OUT}:{S_OUT+3}], s{S_T2} offen')
    stamp(5)
    a('s_branch FINISH')

    a.label('ROLE_B')
    make_srd(a, S_ACT, 8, KV_BYTES)
    make_srd(a, S_WGT, 12, W_BYTES)
    a(f'v_lshlrev_b32 v{V_L16}, 4, v0')
    a(f's_lshl_b32 s{S_T0}, s{S_B}, 5')
    a(f's_add_u32 s{S_T0}, s{S_T0}, s{S_H}')
    a(f's_add_u32 s{S_T0}, s{S_T0}, s{S_HL}')
    a(f's_lshl_b32 s{S_T0}, s{S_T0}, 2')
    a(f's_add_u32 s{S_T0}, s{S_T0}, {FLAG_OFF}')
    a(f'v_mov_b32 v{V_TMP}, 0')
    a('s_mov_b64 exec, 1')
    a(f'buffer_store_dword v{V_TMP}, v{V_TMP}, s[{S_WS}:{S_WS+3}], s{S_T0} offen sc1')
    a('s_mov_b64 exec, -1')
    a(f's_mov_b32 s{S_T2}, 0xCCCD')
    a(f's_mul_i32 s{S_T3}, s{S_W}, {16*1280}')
    for p in range(5):
        a(f'v_add_u32 v{V_TMP+4}, {64*p}, v0')
        a(f'v_mul_lo_u32 v{V_TMP+1}, v{V_TMP+4}, s{S_T2}')
        a(f'v_lshrrev_b32 v{V_TMP+1}, 20, v{V_TMP+1}')
        a(f'v_mul_u32_u24 v{V_TMP+2}, 20, v{V_TMP+1}')
        a(f'v_sub_u32 v{V_TMP+2}, v{V_TMP+4}, v{V_TMP+2}')
        a(f'v_mul_u32_u24 v{V_TMP+1}, 1280, v{V_TMP+1}')
        a(f'v_lshl_add_u32 v{V_TMP+1}, v{V_TMP+2}, 4, v{V_TMP+1}')
        a(f'v_add_u32 v{V_PW+p}, s{S_T3}, v{V_TMP+1}')
        if p % 4: a(f'v_subrev_u32 v{V_PW+p}, {1024*(p%4)}, v{V_PW+p}')
    act_patterns(V_PA, 384, False)
    a(f's_mul_i32 s{S_BASEW}, s{S_H}, {192*1280}')
    a(f's_mul_i32 s{S_T0}, s{S_HL}, 320')
    a(f's_add_u32 s{S_BASEW}, s{S_BASEW}, s{S_T0}')
    a(f's_lshl_b32 s{S_T0}, s{S_B}, 5')
    a(f's_add_u32 s{S_T0}, s{S_T0}, s{S_H}')
    a(f's_mul_i32 s{S_BASEA}, s{S_T0}, 12288')
    a(f's_mul_i32 s{S_M0W}, s{S_W}, 5120')
    a(f's_lshl_b32 s{S_M0A}, s{S_W}, 12')
    a(f's_add_u32 s{S_M0A}, s{S_M0A}, 20480')
    a(f's_mov_b32 s{S_ORD}, 0')

    def B_next_stage():
        return [f's_add_u32 s{S_T0}, s{S_ORD}, s{S_LAT}',
                f's_and_b32 s{S_T0}, s{S_T0}, 3',
                f's_lshr_b32 s{S_T1}, s{S_ORD}, 2',
                f's_mul_i32 s{S_SOW}, s{S_T0}, {192*1280}',
                f's_mul_i32 s{S_T2}, s{S_T1}, {64*1280}',
                f's_add_u32 s{S_SOW}, s{S_SOW}, s{S_T2}',
                f's_add_u32 s{S_SOW}, s{S_SOW}, s{S_BASEW}',
                f's_mul_i32 s{S_SOA}, s{S_T0}, 12288',
                f's_lshl_b32 s{S_T1}, s{S_T1}, 7',
                f's_add_u32 s{S_SOA}, s{S_SOA}, s{S_T1}',
                f's_add_u32 s{S_SOA}, s{S_SOA}, s{S_BASEA}',
                f's_cmp_ge_u32 s{S_ORD}, 12',
                f's_cselect_b32 s{S_SOW}, 0, s{S_SOW}',
                f's_cselect_b32 s{S_SOA}, 0, s{S_SOA}',
                f's_cselect_b32 s{S_WGT+2}, 0, s{S_WGT+2}',
                f's_cselect_b32 s{S_ACT+2}, 0, s{S_ACT+2}',
                f's_add_u32 s{S_ORD}, s{S_ORD}, 1']
    def B_dma_groups():
        return [
            [f's_add_u32 m0, s{S_DSLOT}, s{S_M0W}', 's_nop 0', dma(V_PW+0, S_WGT, S_SOW, 0)],
            [dma(V_PW+1, S_WGT, S_SOW, 1024)],
            [dma(V_PW+2, S_WGT, S_SOW, 2048)],
            [dma(V_PW+3, S_WGT, S_SOW, 3072)],
            [f's_add_u32 m0, m0, 4096', 's_nop 0', dma(V_PW+4, S_WGT, S_SOW, 0)],
            [f's_add_u32 m0, s{S_DSLOT}, s{S_M0A}', 's_nop 0', dma(V_PA+0, S_ACT, S_SOA, 0)],
            [dma(V_PA+1, S_ACT, S_SOA, 1024)],
            [dma(V_PA+2, S_ACT, S_SOA, 2048)],
            [dma(V_PA+3, S_ACT, S_SOA, 3072)],
        ]
    a(f's_mov_b32 s{S_DSLOT}, 0')
    for n in range(2):
        for i in B_next_stage(): a(i)
        for g in B_dma_groups():
            for i in g: a(i)
        adv_slot(S_DSLOT)
    a(f'v_mul_u32_u24 v{V_TMP}, 320, v9')
    a(f'v_add_u32 v{V_RW0}, v{V_TMP}, v8')
    for k in range(4):
        a(f'v_xor_b32 v{V_TMP}, {32*k}, v10')
        a(f'v_add_u32 v{V_RA+k}, s{S_M0A}, v{V_TMP}')
    def accB(i, cb):
        return ar(80*i + 16*cb, 16) if i < 2 else vr(96 + 80*(i-2) + 16*cb, 16)
    for i in range(160):
        a(f'v_accvgpr_write_b32 a{i}, 0')
        a(f'v_mov_b32 v{96+i}, 0')
    a(f's_mov_b32 s{S_RSLOT}, 0')
    set_read_slot(1)
    FRB = 48
    def B_reads(kk, buf):
        fb = FRB + 24*buf
        r = [f'ds_read_b128 {vr(fb+20,4)}, v{V_CA+kk}']
        for cb in range(5):
            for u in range(2):
                r.append(f'ds_read_b64_tr_b16 {vr(fb+4*cb+2*u,2)}, v{V_CW0} offset:{(16*kk+4*u)*320 + 64*cb}')
        return r
    a('s_waitcnt vmcnt(9)')
    a('s_barrier')
    stamp(1)
    handshake([f's_lshl_b32 s{S_T0}, s{S_BQ}, 5', f's_add_u32 s{S_T0}, s{S_T0}, s{S_H}',
               f's_add_u32 s{S_T0}, s{S_T0}, s{S_HL}', f's_add_u32 s{S_T0}, s{S_T0}, 128'])
    for i in B_reads(0, 0): a(i)
    a(f's_mov_b32 s{S_N}, 0')
    a.label('B_LOOP')
    for si in range(4):
        dmas = B_dma_groups()
        for i in B_next_stage(): a(i)
        placed = 0; ngaps = 15
        for kk in range(4):
            buf = kk & 1
            fb = FRB + 24*buf
            nxt = B_reads((kk+1) & 3, buf ^ 1)
            for cb in range(5):
                cnt = 8 if cb == 0 else 9
                a(f's_waitcnt lgkmcnt({cnt})')
                a(f'v_mfma_f32_32x32x16_bf16 {accB(si,cb)}, {vr(fb+20,4)}, {vr(fb+4*cb,4)}, {accB(si,cb)}')
                if kk == 3 and cb == 0:
                    adv_slot(S_RSLOT)
                    set_read_slot(1)
                    a('s_waitcnt vmcnt(9)')
                    a('s_barrier')
                rs = nxt[0:3] if cb == 0 else nxt[1+2*cb:3+2*cb]
                for r in rs: a(r)
                if kk < 3:
                    gap = kk*5 + cb
                    want = (gap+1)*len(dmas)//ngaps
                    while placed < want:
                        for ins in dmas[placed]: a(ins)
                        placed += 1
        adv_slot(S_DSLOT)
    a(f's_add_u32 s{S_N}, s{S_N}, 1')
    a(f's_cmp_lt_u32 s{S_N}, 3')
    a('s_cbranch_scc1 B_LOOP')
    stamp(2)
    a('s_waitcnt vmcnt(0) lgkmcnt(0)')
    a('s_nop 7')
    def vwb(i): return {2: 96, 3: 136, 0: 176, 1: 216}[i]
    for i in (2, 3):
        src = 96 + 80*(i-2)
        for j in range(40):
            a(f'v_cvt_pk_bf16_f32 v{vwb(i)+j}, v{src+2*j}, v{src+2*j+1}')
    for i in (0, 1):
        for j in range(0, 40, 2):
            for e in range(4):
                a(f'v_accvgpr_read_b32 v{V_TMP+e}, a{80*i+2*j+e}')
            a(f'v_cvt_pk_bf16_f32 v{vwb(i)+j}, v{V_TMP}, v{V_TMP+1}')
            a(f'v_cvt_pk_bf16_f32 v{vwb(i)+j+1}, v{V_TMP+2}, v{V_TMP+3}')
    T = V_TMP
    a(f's_add_u32 s{S_T0}, s{S_H}, s{S_BQ}')
    a(f's_lshl_b32 s{S_T0}, s{S_T0}, 2')
    a(f's_mov_b32 s{S_T1}, 0x01010101')
    a(f'v_mov_b32 v{T}, 0')
    a.label('B_HS')
    spin_check()
    a(f'buffer_load_dword v{T+1}, v{T}, s[{S_DBG}:{S_DBG+3}], s{S_T0} offen sc1')
    a('s_waitcnt vmcnt(0)')
    a(f'v_cmp_ne_u32 vcc, s{S_T1}, v{T+1}')
    a('s_cbranch_vccnz B_HS')
    SP = 86
    for i in range(4):
        a(f's_add_u32 s{S_T0}, s{S_LAT}, {i}')
        a(f's_and_b32 s{S_T0}, s{S_T0}, 3')
        a(f's_add_u32 s{S_T0}, s{S_T0}, s{S_H}')
        a(f's_lshl_b32 s{S_T1}, s{S_B}, 5')
        a(f's_add_u32 s{S_T0}, s{S_T0}, s{S_T1}')
        a(f's_lshl_b32 s{SP+i}, s{S_T0}, 11')
    a(f'v_lshrrev_b32 v{T+2}, 2, v3')
    a(f'v_mul_u32_u24 v{T+2}, {8*5120}, v{T+2}')
    a(f'v_lshl_add_u32 v{T+2}, v2, 6, v{T+2}')
    a(f'v_and_b32 v{T+3}, 3, v3')
    a(f'v_lshl_add_u32 v{T+2}, v{T+3}, 4, v{T+2}')
    a(f's_lshl_b32 s{S_T2}, s{S_B}, 6')
    a(f's_add_u32 s{S_T2}, s{S_T2}, s{S_HG}')
    a(f's_mul_i32 s{S_T2}, s{S_T2}, 5120')
    a(f's_mul_i32 s{S_T3}, s{S_HL}, 1280')
    a(f's_add_u32 s{S_T2}, s{S_T2}, s{S_T3}')
    a(f's_add_u32 s{S_T2}, s{S_T2}, {PART_OFF}')
    stamp(3)
    PF = 48
    a.label('B_POLL')
    spin_check()
    for i in range(4):
        for t in range(2):
            o = ' offset:1024' if t else ''
            a(f'buffer_load_dwordx4 {vr(PF+8*i+4*t,4)}, v{V_L16}, s[{S_WS}:{S_WS+3}], s{SP+i} offen{o} sc1')
    a('s_waitcnt vmcnt(0)')
    a(f'v_or3_b32 v{T}, v{PF}, v{PF+1}, v{PF+2}')
    for j in range(3, 31, 2):
        a(f'v_or3_b32 v{T}, v{T}, v{PF+j}, v{PF+j+1}')
    a(f'v_or_b32 v{T}, v{T}, v{PF+31}')
    a(f'v_cmp_gt_i32 vcc, 0, v{T}')
    a('s_cbranch_vccnz B_POLL')
    stamp(4)
    OA = [80, 12]
    OB = [28, 4]
    def emit_store(cb):
        o = OA[cb & 1]; ob = OB[cb & 1]
        for j in range(8):
            a(f'v_cvt_pk_bf16_f32 v{ob+j}, v{o+2*j}, v{o+2*j+1}')
        for t in range(2):
            a(f'buffer_store_dwordx4 {vr(ob+4*t,4)}, v{T+2}, s[{S_WS}:{S_WS+3}], s{S_T2} offen offset:{(cb*2+t)*128} sc1')
    for cb in range(5):
        o = OA[cb & 1]
        n = 0
        for i in range(4):
            for t in range(2):
                c = '0' if n == 0 else vr(o,16)
                a(f'v_mfma_f32_32x32x16_bf16 {vr(o,16)}, {vr(vwb(i)+8*cb+4*t,4)}, {vr(PF+8*i+4*t,4)}, {c}')
                n += 1
                if n == 3 and cb > 0:
                    a('s_nop 9')
                    emit_store(cb-1)
    a('s_nop 15')
    emit_store(4)
    a('s_waitcnt vmcnt(0)')
    a(f's_lshl_b32 s{S_T0}, s{S_B}, 5')
    a(f's_add_u32 s{S_T0}, s{S_T0}, s{S_H}')
    a(f's_add_u32 s{S_T0}, s{S_T0}, s{S_HL}')
    a(f's_lshl_b32 s{S_T0}, s{S_T0}, 2')
    a(f's_add_u32 s{S_T0}, s{S_T0}, {FLAG_OFF}')
    a(f'v_mov_b32 v{T}, 1')
    a(f'v_mov_b32 v{T+1}, 0')
    a('s_mov_b64 exec, 1')
    a(f'buffer_store_dword v{T}, v{T+1}, s[{S_WS}:{S_WS+3}], s{S_T0} offen sc1')
    a('s_mov_b64 exec, -1')
    stamp(5)

    a.label('FINISH')
    if pad_us:
        a('s_waitcnt vmcnt(0)')
        a.label('PADL')
        a('s_memrealtime s[92:93]')
        a('s_waitcnt lgkmcnt(0)')
        a('s_sub_u32 s92, s92, s90')
        a(f's_cmp_lt_u32 s92, {pad_us*100}')
        a('s_cbranch_scc1 PADL')
    if stamps:
        a('s_waitcnt vmcnt(0)')
        stamp(6)
        a('s_waitcnt lgkmcnt(0)')
        a(f's_cmp_lg_u32 s{S_W}, 0')
        a('s_cbranch_scc1 DONE')
        a('s_mov_b64 exec, 1')
        a(f's_mul_i32 s{S_T0}, s2, {8*NST}')
        a(f's_add_u32 s{S_T0}, s{S_T0}, {STAMP_OFF}')
        a('v_mov_b32 v3, 0')
        for i in range(NST):
            a(f'v_mov_b32 v4, s{S_STAMP+2*i}')
            a(f'v_mov_b32 v5, s{S_STAMP+2*i+1}')
            a(f'buffer_store_dwordx2 v[4:5], v3, s[{S_WS}:{S_WS+3}], s{S_T0} offen offset:{8*i}')
            a('s_nop 1')
        a('s_waitcnt vmcnt(0)')
    a.label('BAIL')
    a.label('DONE')
    a('s_endpgm')
    kernel_desc(a, NAME, 512, 102, 256)
    return a.text()

if __name__ == '__main__':
    d = 'cdna_kernels/'
    open(d + 'v1.s', 'w').write(gen())
    open(d + 'v1_st.s', 'w').write(gen(stamps=True))
    open(d + 'v1_pad40.s', 'w').write(gen(pad_us=40))
    open(d + 'v1_pad25.s', 'w').write(gen(pad_us=25))
    open(d + 'v1_pad21.s', 'w').write(gen(pad_us=21))
```

```python
import sys, math, struct
from asmlib import *

def f32bits(x): return struct.unpack('<I', struct.pack('<f', x))[0]

def gen(probe=None, pad=None, empties=0):
    a = Asm()
    a.raw(HEADER.rstrip('\n'))
    if probe:
        a.raw(f'; @launch kernel=probe_kernel grid=({probe["nwg"]},1,1) block=(256,1,1) lds=65536')
    a.raw('; @launch kernel=p1_kernel grid=(512,1,1) block=(64,1,1) lds=0')
    a.raw('; @launch kernel=p2_kernel grid=(320,1,1) block=(64,1,1) lds=0')
    for i in range(empties):
        a.raw('; @launch kernel=empty_kernel grid=(256,1,1) block=(64,1,1) lds=0')
    a.raw('.amdgcn_target "amdgcn-amd-amdhsa--gfx950"')
    kernel_begin(a, 'p1_kernel')
    a('s_cmp_ge_u32 s2, 512')
    a('s_cbranch_scc1 P1_done')
    if pad: a('s_memrealtime s[90:91]')
    a('s_load_dwordx4 s[4:7], s[0:1], 0')
    a('s_load_dwordx2 s[8:9], s[0:1], 24')
    a('s_load_dwordx2 s[10:11], s[0:1], 56')
    a('s_waitcnt lgkmcnt(0)')
    make_srd(a, 12, 4, X_BYTES)
    make_srd(a, 16, 6, KV_BYTES)
    make_srd(a, 20, 8, W_BYTES)
    make_srd(a, 24, 10, WS_BYTES)
    a('s_and_b32 s28, s2, 31')
    a('s_lshr_b32 s29, s2, 5')
    a('v_and_b32 v1, 31, v0')
    a('v_lshrrev_b32 v2, 5, v0')
    a('v_mul_u32_u24 v3, 384, v1')
    a('v_lshl_add_u32 v3, v2, 4, v3')
    a('s_mul_i32 s30, s2, 12288')
    KF = 16
    for ks in range(12):
        a(f'buffer_load_dwordx4 {vr(KF+4*ks,4)}, v3, s[16:19], s30 offen offset:{ks*32}')
    a('v_and_b32 v4, 0x13, v1')
    a('v_and_b32 v5, 4, v1')
    a('v_lshl_or_b32 v4, v5, 1, v4')
    a('v_and_b32 v5, 8, v1')
    a('v_lshrrev_b32 v5, 1, v5')
    a('v_or_b32 v4, v4, v5')
    a('s_movk_i32 s31, 12288')
    a('v_mul_lo_u32 v4, v4, s31')
    a('v_lshl_add_u32 v4, v2, 4, v4')
    a('s_mul_i32 s32, s28, 384')
    a('v_mul_u32_u24 v6, 1280, v1')
    a('v_lshl_add_u32 v6, v2, 4, v6')
    a('s_mul_i32 s33, s29, 40960')
    WF = 64; XF = 112; ACC = 120; AB = 136; S = 144
    for i in range(16):
        a(f'v_mov_b32 v{S+i}, 0')
    a('s_mov_b32 s34, 0')
    a.label('P1_loop')
    for ks in range(12):
        a(f'buffer_load_dwordx4 {vr(WF+4*ks,4)}, v4, s[20:23], s32 offen offset:{ks*32}')
    for t in range(2):
        a(f'buffer_load_dwordx4 {vr(XF+4*t,4)}, v6, s[12:15], s33 offen offset:{t*32}')
    a('s_waitcnt vmcnt(0)')
    for ks in range(12):
        c = '0' if ks == 0 else vr(ACC,16)
        a(f'v_mfma_f32_32x32x16_bf16 {vr(ACC,16)}, {vr(WF+4*ks,4)}, {vr(KF+4*ks,4)}, {c}')
    a('s_nop 15')
    for i in range(8):
        a(f'v_cvt_pk_bf16_f32 v{AB+i}, v{ACC+2*i}, v{ACC+2*i+1}')
    a('s_nop 1')
    for t in range(2):
        a(f'v_mfma_f32_32x32x16_bf16 {vr(S,16)}, {vr(AB+4*t,4)}, {vr(XF+4*t,4)}, {vr(S,16)}')
    a('s_nop 15')
    a('s_add_u32 s32, s32, 32*12288')
    a('s_add_u32 s33, s33, 64')
    a('s_add_u32 s34, s34, 1')
    a('s_cmp_lt_u32 s34, 20')
    a('s_cbranch_scc1 P1_loop')
    a(f'v_max_f32 v8, v{S}, v{S+1}')
    for i in range(2,16):
        a(f'v_max_f32 v8, v8, v{S+i}')
    a('v_mov_b32 v9, v8')
    a('s_nop 1')
    a('v_permlane32_swap_b32 v8, v9')
    a('s_nop 1')
    a('v_max_f32 v8, v8, v9')
    c = math.log2(math.e) / math.sqrt(192.0)
    a(f's_mov_b32 s35, {f32bits(c):#x}')
    a('v_mul_f32 v8, s35, v8')
    for i in range(16):
        a(f'v_fma_f32 v{S+i}, v{S+i}, s35, -v8')
    for i in range(16):
        a(f'v_exp_f32 v{S+i}, v{S+i}')
    a('s_nop 0')
    a(f'v_add_f32 v8, v{S}, v{S+1}')
    for i in range(2,16):
        a(f'v_add_f32 v8, v8, v{S+i}')
    a('v_mov_b32 v9, v8')
    a('s_nop 1')
    a('v_permlane32_swap_b32 v8, v9')
    a('s_nop 1')
    a('v_add_f32 v8, v8, v9')
    a('v_rcp_f32 v8, v8')
    a('s_nop 0')
    for i in range(16):
        a(f'v_mul_f32 v{S+i}, v{S+i}, v8')
    for i in range(8):
        a(f'v_cvt_pk_bf16_f32 v{AB+i}, v{S+2*i}, v{S+2*i+1}')
    a('v_lshlrev_b32 v10, 4, v0')
    a('s_lshl_b32 s36, s2, 11')
    a(f'buffer_store_dwordx4 {vr(AB,4)}, v10, s[24:27], s36 offen')
    a(f'buffer_store_dwordx4 {vr(AB+4,4)}, v10, s[24:27], s36 offen offset:1024')
    a('s_waitcnt vmcnt(0)')
    if pad:
        a.label('PAD1')
        a('s_sleep 1')
        a('s_memrealtime s[92:93]')
        a('s_waitcnt lgkmcnt(0)')
        a('s_sub_u32 s92, s92, s90')
        a(f's_cmp_lt_u32 s92, {pad[0]*100}')
        a('s_cbranch_scc1 PAD1')
    a.label('P1_done')
    a('s_endpgm')

    kernel_begin(a, 'p2_kernel')
    a('s_cmp_ge_u32 s2, 320')
    a('s_cbranch_scc1 P2_done')
    if pad: a('s_memrealtime s[90:91]')
    a('s_load_dwordx2 s[4:5], s[0:1], 16')
    a('s_load_dwordx4 s[8:11], s[0:1], 32')
    a('s_load_dwordx2 s[6:7], s[0:1], 56')
    a('s_waitcnt lgkmcnt(0)')
    make_srd(a, 12, 4, KV_BYTES)
    make_srd(a, 16, 8, W_BYTES)
    make_srd(a, 20, 10, OUT_BYTES)
    make_srd(a, 24, 6, WS_BYTES)
    a('s_and_b32 s29, s2, 15')
    a('s_lshr_b32 s28, s2, 4')
    a('v_and_b32 v1, 31, v0')
    a('v_lshrrev_b32 v2, 5, v0')
    a('v_mul_u32_u24 v3, 384, v1')
    a('v_lshl_add_u32 v3, v2, 4, v3')
    a('s_mul_i32 s30, s29, 32*12288')
    a('v_and_b32 v4, 0x13, v1')
    a('v_and_b32 v5, 4, v1')
    a('v_lshl_or_b32 v4, v5, 1, v4')
    a('v_and_b32 v5, 8, v1')
    a('v_lshrrev_b32 v5, 1, v5')
    a('v_or_b32 v4, v4, v5')
    a('v_lshlrev_b32 v4, 1, v4')
    a('v_mul_u32_u24 v5, 8*1280, v2')
    a('v_add_u32 v4, v4, v5')
    a('v_add_u32 v5, 3*1280, v4')
    a('v_add_u32 v7, 6*1280, v4')
    a('s_lshl_b32 s32, s28, 6')
    a('v_lshlrev_b32 v10, 4, v0')
    a('s_lshl_b32 s33, s29, 16')
    VF = 16; WF = 64; PF = 112; ACC = 120; AB = 136; O = 144
    for i in range(16):
        a(f'v_mov_b32 v{O+i}, 0')
    a('s_mov_b32 s34, 0')
    a.label('P2_loop')
    for ks in range(12):
        a(f'buffer_load_dwordx4 {vr(VF+4*ks,4)}, v3, s[12:15], s30 offen offset:{ks*32}')
    for t in range(2):
        a(f'buffer_load_dwordx4 {vr(PF+4*t,4)}, v10, s[24:27], s33 offen offset:{t*1024}')
    for ks in range(12):
        for j in range(8):
            vreg = [4,4,4,5,5,5,7,7][j]; off = [0,1,2,0,1,2,0,1][j]*1280
            a(f'buffer_load_ushort v{160+j}, v{vreg}, s[16:19], s32 offen offset:{off}')
        a('s_add_u32 s32, s32, 16*1280')
        a('s_waitcnt vmcnt(0)')
        for j in range(4):
            a(f'v_lshl_or_b32 v{WF+4*ks+j}, v{160+2*j+1}, 16, v{160+2*j}')
    a('s_nop 1')
    for ks in range(12):
        c = '0' if ks == 0 else vr(ACC,16)
        a(f'v_mfma_f32_32x32x16_bf16 {vr(ACC,16)}, {vr(VF+4*ks,4)}, {vr(WF+4*ks,4)}, {c}')
    a('s_nop 15')
    for i in range(8):
        a(f'v_cvt_pk_bf16_f32 v{AB+i}, v{ACC+2*i}, v{ACC+2*i+1}')
    a('s_nop 1')
    for t in range(2):
        a(f'v_mfma_f32_32x32x16_bf16 {vr(O,16)}, {vr(AB+4*t,4)}, {vr(PF+4*t,4)}, {vr(O,16)}')
    a('s_nop 15')
    a('s_add_u32 s30, s30, 12288')
    a('s_add_u32 s33, s33, 2048')
    a('s_add_u32 s34, s34, 1')
    a('s_cmp_lt_u32 s34, 32')
    a('s_cbranch_scc1 P2_loop')
    for i in range(8):
        a(f'v_cvt_pk_bf16_f32 v{AB+i}, v{O+2*i}, v{O+2*i+1}')
    a('v_mul_u32_u24 v6, 1280, v1')
    a('v_lshl_add_u32 v6, v2, 4, v6')
    a('s_mul_i32 s35, s29, 40960')
    a('s_lshl_b32 s36, s28, 6')
    a('s_add_u32 s35, s35, s36')
    a(f'buffer_store_dwordx4 {vr(AB,4)}, v6, s[20:23], s35 offen')
    a(f'buffer_store_dwordx4 {vr(AB+4,4)}, v6, s[20:23], s35 offen offset:32')
    a('s_waitcnt vmcnt(0)')
    if pad:
        a.label('PAD2')
        a('s_sleep 1')
        a('s_memrealtime s[92:93]')
        a('s_waitcnt lgkmcnt(0)')
        a('s_sub_u32 s92, s92, s90')
        a(f's_cmp_lt_u32 s92, {pad[1]*100}')
        a('s_cbranch_scc1 PAD2')
    a.label('P2_done')
    a('s_endpgm')

    if probe:
        nwg = probe['nwg']; nt = ' nt' if probe.get('nt') else ''
        per = probe['bytes']
        kernel_begin(a, 'probe_kernel')
        a(f's_cmp_ge_u32 s2, {nwg}')
        a('s_cbranch_scc1 PR_done')
        a('s_load_dwordx4 s[4:7], s[0:1], 8')
        a('s_load_dwordx4 s[8:11], s[0:1], 24')
        a('s_waitcnt lgkmcnt(0)')
        make_srd(a, 12, 4, KV_BYTES)
        make_srd(a, 16, 6, KV_BYTES)
        make_srd(a, 20, 8, W_BYTES)
        make_srd(a, 24, 10, W_BYTES)
        a('v_lshlrev_b32 v1, 4, v0')
        if probe.get('ws') is not None:
            a('s_load_dwordx2 s[4:5], s[0:1], 56')
            a('s_waitcnt lgkmcnt(0)')
            make_srd(a, 12, 4, WS_BYTES)
        for srd in ((12, 16, 20, 24) if probe.get('ws') is None else (12,)):
            a(f's_mul_i32 s30, s2, {per}')
            if probe.get('ws') is not None:
                a(f's_add_u32 s30, s30, {probe["ws"]}')
            a(f's_add_u32 s31, s30, {per}')
            l = a.newlabel('PR_loop')
            a.label(l)
            for i in range(8):
                a(f'buffer_load_dwordx4 {vr(8+4*i,4)}, v1, s[{srd}:{srd+3}], s30 offen{nt}')
                a('s_add_u32 s30, s30, 4096')
                a('s_waitcnt vmcnt(7)')
            a('s_cmp_lt_u32 s30, s31')
            a(f's_cbranch_scc1 {l}')
        a('s_waitcnt vmcnt(0)')
        a.label('PR_done')
        a('s_endpgm')
    if empties:
        kernel_begin(a, 'empty_kernel')
        a('s_endpgm')
        kernel_desc(a, 'empty_kernel', 8)
    kernel_desc(a, 'p1_kernel', 160)
    kernel_desc(a, 'p2_kernel', 168)
    if probe:
        kernel_desc(a, 'probe_kernel', 64)
    return a.text()

if __name__ == '__main__':
    open('base0.s', 'w').write(gen())
    open('base_probe8.s', 'w').write(gen(dict(nwg=8, bytes=786432)))
    open('base_probe8nt.s', 'w').write(gen(dict(nwg=8, bytes=786432, nt=True)))
    open('base_probe192.s', 'w').write(gen(dict(nwg=192, bytes=32768)))
    open('base_probe192nt.s', 'w').write(gen(dict(nwg=192, bytes=32768, nt=True)))
    open('base_ws_def.s', 'w').write(gen(dict(nwg=256, bytes=393216, ws=16<<20)))
    open('base_ws_nt.s', 'w').write(gen(dict(nwg=256, bytes=393216, ws=16<<20, nt=True)))
    open('base_ws2_def.s', 'w').write(gen(dict(nwg=256, bytes=393216, ws=150<<20)))
    open('base_ws2_nt.s', 'w').write(gen(dict(nwg=256, bytes=393216, ws=150<<20, nt=True)))
    open('base_pad.s', 'w').write(gen(pad=(60, 260)))
    open('base_pad_e1.s', 'w').write(gen(pad=(60, 260), empties=1))
    open('base_pad_e4.s', 'w').write(gen(pad=(60, 260), empties=4))
```
